```python
import torch

def _softmax(x, axis=-1):
    return torch.softmax(x, dim=axis)

def _gelu(x):
    return torch.nn.functional.gelu(x, approximate='tanh')

def _silu(x):
    return torch.nn.functional.silu(x)

def _sigmoid(x):
    return torch.sigmoid(x)

def _layernorm(x, axis=-1, eps=1e-05):
    m = x.mean(dim=axis, keepdim=True)
    v = x.var(dim=axis, keepdim=True, unbiased=False)
    return (x - m) / torch.sqrt(v + eps)

def _scatter_add(tgt, idx, src, axis=0):
    return tgt.clone().index_add_(axis, idx, src)

def _segment_sum(src, seg, n):
    out = torch.zeros((n,) + src.shape[1:], dtype=src.dtype)
    return out.index_add_(0, seg, src)

def _pad(x, pw):
    flat = tuple((v for pair in reversed(pw) for v in pair))
    return torch.nn.functional.pad(x, flat)
kernel_name = 'adaLN_cond__softmax_full_mha__glu_gated_geglu__prompt'

def setup_inputs():

    _w = lambda a: (lambda t: t.to(torch.bfloat16) if t.is_floating_point() else t)(torch.as_tensor(a))

    def _A_setup():
        B, S, D = (1, 2048, 640)
        return {'x': _w((lambda *s: torch.randn(*s, dtype=torch.bfloat16) * 0.05)(B, S, D)), 'wqkv': _w((lambda *s: torch.randn(*s, dtype=torch.bfloat16) * 0.05)(D, 3 * D)), 'wo': _w((lambda *s: torch.randn(*s, dtype=torch.bfloat16) * 0.05)(D, D))}
    _A_in = _A_setup()

    def _B_setup():
        B, S, Dm, Df = (1, 2048, 640, 1536)
        return {'x': _w((lambda *s: torch.randn(*s, dtype=torch.bfloat16) * 0.05)(B, S, Dm)), 'w_gate': _w((lambda *s: torch.randn(*s, dtype=torch.bfloat16) * 0.8)(Dm, Df) * Dm ** (-0.5)), 'w_up': _w((lambda *s: torch.randn(*s, dtype=torch.bfloat16) * 0.8)(Dm, Df) * Dm ** (-0.5)), 'w_down': _w((lambda *s: torch.randn(*s, dtype=torch.bfloat16) * 0.8)(Df, Dm) * Df ** (-0.5))}
    _B_in = _B_setup()
    return {'A_x': _A_in['x'], 'A_wqkv': _A_in['wqkv'], 'A_wo': _A_in['wo'], 'B_x': _B_in['x'], 'B_w_gate': _B_in['w_gate'], 'B_w_up': _B_in['w_up'], 'B_w_down': _B_in['w_down'], 'c': _w((lambda *s: torch.randn(*s, dtype=torch.bfloat16) * 0.1)(1, 640) * 8.0), 'w_mod': _w((lambda *s: torch.randn(*s, dtype=torch.bfloat16) * 0.1)(640, 6 * 640) * 640 ** (-0.5) * 8.0)}

def reference(A_x, A_wqkv, A_wo, B_x, B_w_gate, B_w_up, B_w_down, c, w_mod):

    def _A_ref(x, wqkv, wo):
        B, S, D = x.shape
        H = 32
        Dh = D // H
        qkv = (lambda x, *d: x.permute(*d))((x @ wqkv).reshape(B, S, 3, H, Dh), 2, 0, 3, 1, 4)
        q, k, v = (qkv[0], qkv[1], qkv[2])
        scale = Dh ** (-0.5)
        scores = torch.einsum('bhqd,bhkd->bhqk', q, k) * scale
        p = _softmax(scores, axis=-1)
        o = torch.einsum('bhqk,bhkd->bhqd', p, v)
        return (lambda x, *d: x.permute(*d))(o, 0, 2, 1, 3).reshape(B, S, D) @ wo

    def _B_ref(x, w_gate, w_up, w_down):
        g = torch.einsum('bsd,df->bsf', x, w_gate)
        u = torch.einsum('bsd,df->bsf', x, w_up)
        h = _gelu(g) * u
        return torch.einsum('bsf,fd->bsd', h, w_down)
    x = A_x
    mod = (_silu(c) @ w_mod).reshape(c.shape[0], 6, 1, -1)
    sa, ca, ga, sb, cb, gb = (mod[:, 0].clone(), mod[:, 1].clone(), mod[:, 2].clone(), mod[:, 3].clone(), mod[:, 4].clone(), mod[:, 5].clone())
    h = _layernorm(x, axis=-1) * (1 + ca) + sa
    x = x + ga * _A_ref(h, A_wqkv, A_wo)
    h = _layernorm(x, axis=-1) * (1 + cb) + sb
    x = x + gb * _B_ref(h, B_w_gate, B_w_up, B_w_down)
    return x
```

```python
import re

class Asm:
    def __init__(self):
        self.lines = []
        self.trace = []
        self.vm = 0
        self.lg = 0
        self._lab = 0
        self.rec = True
    def __call__(self, s):
        for ln in s.split("\n"):
            t = ln.split(";")[0].strip()
            if not t:
                continue
            self.lines.append(("" if t.endswith(":") else "    ") + t)
            if t.endswith(":") or t.startswith("."):
                continue
            self.trace.append(t)
            op = t.split()[0]
            if op.startswith("buffer_") or op.startswith("global_"):
                self.vm += 1
            elif op.startswith("ds_"):
                self.lg += 1
        return self
    def c(self, s):
        self.lines.append("    ; " + s)
    def label(self, base="L"):
        self._lab += 1
        return f"{base}_{self._lab}"
    def wait_vm(self, mark):
        n = self.vm - mark
        assert n >= 0
        self(f"s_waitcnt vmcnt({min(n,63)})")
    def wait_lg(self, mark):
        n = self.lg - mark
        assert n >= 0
        self(f"s_waitcnt lgkmcnt({min(n,15)})")
    def wait(self, vm=None, lg=None):
        p = []
        if vm is not None: p.append(f"vmcnt({min(self.vm-vm,63)})")
        if lg is not None: p.append(f"lgkmcnt({min(self.lg-lg,15)})")
        self("s_waitcnt " + " ".join(p))
    def nop(self, n):
        while n > 0:
            k = min(n, 16); self(f"s_nop {k-1}"); n -= k
    def loop_begin(self): return len(self.trace)
    def loop_end(self, start, times=1):
        body = self.trace[start:]
        for _ in range(times): self.trace += body
    def fence(self):
        self.trace.append("#fence")
    def text(self): return "\n".join(self.lines) + "\n"

_reg = re.compile(r"^(-|\|)?(abs\()?([vas])(\d+|\[(\d+):(\d+)\])\)?\|?$")
def regs(tok):
    tok = tok.strip()
    if tok in ("vcc",): return [("s", "vcc")]
    if tok in ("vcc_lo", "vcc_hi"): return [("s", "vcc")]
    if tok in ("exec", "exec_lo", "exec_hi"): return [("s", "exec")]
    if tok == "m0": return [("s", "m0")]
    m = _reg.match(tok)
    if not m: return []
    k = m.group(3)
    if m.group(5) is not None:
        return [(k, i) for i in range(int(m.group(5)), int(m.group(6)) + 1)]
    return [(k, int(m.group(4)))]

TRANS = ("v_exp_", "v_log_", "v_rcp_", "v_rsq_", "v_sqrt_", "v_sin_", "v_cos_")
def passes(op):
    if "32x32x4" in op: return 16
    if "32x32" in op: return 8
    if "16x16" in op: return 4
    raise ValueError(op)

class I:
    pass
def parse(t):
    o = I(); o.t = t
    sp = t.split(None, 1); o.op = op = sp[0]
    rest = sp[1] if len(sp) > 1 else ""
    ops = [x.strip() for x in re.split(r",(?![^\[]*\])", rest)] if rest else []
    mods = ""
    if ops:
        l = ops[-1].split(None, 1)
        if len(l) > 1: ops[-1] = l[0]; mods = l[1]
    o.ops = ops; o.mods = mods
    o.kind = "other"; o.w = []; o.r = []
    R = lambda xs: [r for x in xs for r in regs(x)]
    if op.startswith("v_mfma"):
        o.kind = "mfma"; o.D = regs(ops[0]); o.A = regs(ops[1]); o.B = regs(ops[2]); o.C = regs(ops[3])
        o.w = o.D; o.r = o.A + o.B + o.C; o.p = passes(op)
    elif op.startswith("v_"):
        o.kind = "valu"
        o.trans = op.startswith(TRANS)
        o.dpp = ("_dpp" in op) or ("row_" in mods) or ("quad_perm" in mods)
        o.perm = op.startswith("v_permlane")
        o.rl = op.startswith("v_readlane") or op.startswith("v_readfirstlane")
        o.dl = op.startswith("v_dot")
        if o.perm: o.w = R(ops[:2]); o.r = R(ops[:2])
        elif op.startswith(("v_add_co", "v_sub_co", "v_addc_co", "v_subb_co", "v_mad_u64", "v_div_scale")):
            o.w = R(ops[:2]); o.r = R(ops[2:])
        else:
            o.w = R(ops[:1]); o.r = R(ops[1:])
            if op.startswith(("v_fmac", "v_dot2c", "v_writelane", "v_pk_fmac")) or "UNUSED_PRESERVE" in mods or o.dpp:
                o.r = o.r + o.w
        if op == "v_nop": o.w = []; o.r = []
    elif op.startswith("ds_"):
        o.kind = "ds"
        if op.startswith(("ds_read", "ds_bpermute", "ds_permute", "ds_swizzle")): o.w = R(ops[:1]); o.r = R(ops[1:])
        else: o.r = R(ops)
    elif op.startswith(("buffer_", "global_")):
        o.kind = "vm"; o.lds = " lds" in (" " + mods) or "_lds_" in op
        o.store = "store" in op or "atomic" in op
        o.data = []
        if op.startswith(("buffer_wbl2", "buffer_inv")): pass
        elif o.lds: o.r = R(ops) + [("s", "m0")]
        elif op.startswith("buffer_"):
            if o.store:
                o.r = R(ops); o.data = regs(ops[0])
                if "atomic" in op and "sc0" in mods: o.w = regs(ops[0])
            else: o.w = regs(ops[0]); o.r = R(ops[1:])
        else:
            if o.store: o.r = R(ops); o.data = regs(ops[1])
            else: o.w = regs(ops[0]); o.r = R(ops[1:])
    elif op.startswith("s_"):
        o.kind = "salu"
        if op.startswith(("s_cmp", "s_waitcnt", "s_barrier", "s_branch", "s_cbranch", "s_nop", "s_endpgm", "s_setprio", "s_sleep", "s_bitcmp")):
            o.r = R(ops)
            if "vcc" in op: o.r += [("s", "vcc")]
        elif op.startswith(("s_load", "s_memtime", "s_memrealtime", "s_buffer_load")):
            o.kind = "smem"; o.w = R(ops[:1]); o.r = R(ops[1:])
        else:
            o.w = R(ops[:1]); o.r = R(ops[1:])
            if "saveexec" in op: o.w += [("s", "exec")]
    return o

def check(trace, name="", verbose=True):
    errs = []
    hist = []
    pos = 0
    vmq = []; lgq = []; smem = []
    def err(i, p, need, have, why):
        errs.append(f"[{name}] {why}: need {need} have {have}\n      prod: {p.t}\n      cons: {i.t}")
    for idx, t in enumerate(trace):
        if t == "#fence":
            continue
        i = parse(t)
        if i.op == "s_waitcnt":
            m = re.search(r"vmcnt\((\d+)\)", t)
            if m:
                n = int(m.group(1)); vmq = vmq[len(vmq)-n:] if n < len(vmq) and n > 0 else ([] if n == 0 else vmq)
            m = re.search(r"lgkmcnt\((\d+)\)", t)
            if m:
                n = int(m.group(1))
                if n == 0: lgq = []; smem = []
                else:
                    if smem: errs.append(f"[{name}] counted lgkmcnt with smem outstanding: {t}")
                    if n < len(lgq): lgq = lgq[len(lgq)-n:]
        rs = set(i.r); ws = set(i.w); touch = rs | ws
        for q, nm in ((vmq, "vmcnt"), (lgq, "lgkmcnt"), (smem, "smem")):
            for p in q:
                if set(p.w) & touch:
                    errs.append(f"[{name}] touches pending {nm} result\n      prod: {p.t}\n      cons: {i.t}")
        for (pp, p) in hist:
            d = pos - pp - 1
            pw = set(p.w)
            if p.kind == "valu":
                vw = {r for r in pw if r[0] != "s"}; sw = {r for r in pw if r[0] == "s"}
                if i.kind == "mfma" and vw & rs and d < 2: err(i, p, 2, d, "VALU->MFMA")
                if i.kind == "valu":
                    if p.trans and not i.trans and vw & rs and d < 1: err(i, p, 1, d, "trans->VALU")
                    if (i.perm or i.dpp) and vw & rs and d < 2: err(i, p, 2, d, "VALU->permlane/DPP")
                    if i.rl and vw & rs and d < 1: err(i, p, 1, d, "VALU->readlane")
                    if sw & rs and d < 2: err(i, p, 2, d, "VALU sgpr->VALU const")
                    if ("s","vcc") in sw and i.op.startswith("v_cndmask") and "vcc" in i.t and d < 2: err(i, p, 2, d, "vcc->cndmask")
                    if p.dl and vw & touch and d < 3 and not (i.op == p.op and not (vw & set(regs(i.ops[1]) + regs(i.ops[2])))): err(i, p, 3, d, "DL op result")
                    if ("sdwa" in p.op or "op_sel" in p.mods) and not p.op.startswith("v_pk") and vw & touch and d < 1: err(i, p, 1, d, "opsel/sdwa")
                if i.kind == "vm" and sw & rs and d < 5: err(i, p, 5, d, "VALU sgpr->VMEM")
                if i.kind in ("salu",) and sw & rs and d < 1 and p.rl: err(i, p, 1, d, "readlane sgpr->SALU (pad)")
            elif p.kind == "mfma":
                D = set(p.D)
                far = {2: 5, 4: 8, 8: 12, 16: 20}[p.p]
                if i.kind == "mfma":
                    if D & set(i.A + i.B) and d < far: err(i, p, far, d, "MFMA D->MFMA A/B")
                    if D & set(i.C):
                        if i.C == p.D and i.p == p.p: pass
                        elif d < p.p + 2: err(i, p, p.p + 2, d, "MFMA D->MFMA C overlap")
                    elif D & set(i.D) and d < p.p + 2: err(i, p, p.p + 2, d, "MFMA D->MFMA D WAW")
                elif i.kind in ("valu", "vm", "ds"):
                    if D & touch and d < far: err(i, p, far, d, "MFMA D->VALU/mem")
                if i.kind in ("valu",) and set(p.C) & ws and d < p.p - 1: err(i, p, p.p - 1, d, "MFMA C WAR")
            elif p.kind == "salu":
                if ("s", "m0") in pw and i.kind == "vm" and i.lds and d < 1: err(i, p, 1, d, "m0->DMA")
            elif p.kind == "vm":
                if p.store and len(p.data) >= 3 and set(p.data) & ws:
                    need = 2 if i.kind in ("valu", "mfma") else 1
                    if d < need: err(i, p, need, d, "store data WAR")
        if i.kind == "vm": vmq.append(i)
        elif i.kind == "ds": lgq.append(i)
        elif i.kind == "smem": smem.append(i)
        hist.append((pos, i))
        step = 1
        if i.op == "s_nop": step = int(i.ops[0], 0) + 1
        pos += step
        hist = [(pp, p) for (pp, p) in hist if pos - pp <= 24]
    seen = []
    for e in errs:
        if e not in seen: seen.append(e)
    if verbose:
        for e in seen[:40]: print(e)
    return seen
```

```python
OFF_EPOCH = 0
OFF_FWQ  = 0x1000
OFF_FH   = 0x2000
OFF_FKV  = 0x4000
OFF_FO   = 0x6000
OFF_FX1  = 0x8000
OFF_FHH  = 0xA000
OFF_FWO  = 0xC000
OFF_FWD  = 0xC100
OFF_FWG  = 0xC400
OFF_FCS  = 0xC800
OFF_MODG = 0x10000
OFF_CSB  = 0x14000
OFF_ST   = 0x30000
OFF_WQF  = 0x100000
OFF_WOF  = 0x380000
OFF_WDF  = 0x480000
OFF_WGUF = 0x680000
OFF_H    = 0xA80000
OFF_KV   = 0xD00000
OFF_O    = 0x1280000
OFF_X1S  = 0x1500000
OFF_HH   = 0x1780000
OFF_DBG  = 0x1E00000
WS_SIZE  = 0x2000000
KVB = 2688
KV_R = 1024; KV_V0 = 1280; KV_V1 = 1936
TAG_INC = 0x9E3779B9
```

```python
from gen import *
from phases_order import wgu_order

MF32 = "v_mfma_f32_32x32x16_bf16"
MF16 = "v_mfma_f32_16x16x32_bf16"
MF2B = "v_mfma_f32_32x32x4bf16_1k"
L_VT = 8 * 4096
L_Q = 12 * 4096
L_STG = 65536
L_MRG = 28 * 4096

def p1(A, cfg):
    WF, ACC = 32, 64
    A(f"""v_lshlrev_b32 v16, 2, {vL}
    v_min_u32 v17, 55, {vL}
    v_lshlrev_b32 v17, 2, v17
    s_lshr_b32 s50, {sJ}, 3
    s_lshl_b32 s50, s50, 9
    s_add_u32 s50, s50, {OFF_FWQ}
    v_and_b32 v18, 31, {vL}
    v_cmp_gt_u32 vcc, 24, v18
    v_mov_b32 v19, {OOB}
    s_mul_i32 s42, {sJ}, 163840
    s_add_u32 s42, s42, {sWB}
    v_cndmask_b32 v19, v19, {vL16}, vcc
    s_add_u32 s42, s42, {OFF_WQF}""")
    poll(A, [("v16", "s50", 0), ("v17", "s50", 256)], 20, "pwq")
    stamp(A, cfg, 5)
    def wdma(n):
        A(f"s_add_u32 m0, {sWB}, {(n % 9) * 16384}")
        if n: A("s_add_u32 s42, s42, 16384")
        else: A("s_nop 0")
        for t in range(4):
            A(f"buffer_load_dwordx4 {vL16 if t < 3 else 'v19'}, {WS}, s42 offen offset:{1024*t} sc1 lds")
    for n in range(9): wdma(n)
    A(f"""v_and_b32 v16, 15, {vL}
    v_lshlrev_b32 v16, 2, v16
    s_lshl_b32 s50, {sT}, 7
    s_add_u32 s50, s50, {OFF_FH}
    s_mul_i32 s43, {sT}, 40960
    s_add_u32 s43, s43, {OFF_H}""")
    poll(A, [("v16", "s50", 0)], 20, "ph")
    stamp(A, cfg, 6)
    tok = []
    for s in range(40):
        if s and s % 4 == 0: A("s_add_u32 s43, s43, 4096")
        A(f"buffer_load_dwordx4 {ar(4*s,4)}, {vL16}, {WS}, s43 offen offset:{1024*(s%4)} sc1")
        tok.append(A.vm)
    A("s_barrier")
    rd = {}
    def wread(s, t):
        va, im = lds_addr((s % 36) * 4096 + 1024 * t)
        A(f"ds_read_b128 {vr(WF+4*t,4)}, {va} offset:{im}")
        rd[(s, t)] = A.lg
    for t in range(4): wread(0, t)
    m_late = None
    for s in range(40):
        if s == 35:
            A.wait_vm(m_late); A("s_barrier")
        for t in range(4):
            if t == 0: A.wait(vm=tok[s], lg=rd[(s, t)])
            else: A.wait_lg(rd[(s, t)])
            c = vr(ACC+16*t, 16) if s else "0"
            A(f"{MF32} {vr(ACC+16*t,16)}, {vr(WF+4*t,4)}, {ar(4*s,4)}, {c}")
            if s + 1 < 40: wread(s + 1, t)
            if s == 4 and t == 0:
                A("s_barrier"); wdma(9); m_late = A.vm
    stamp(A, cfg, 7)
    A(f"""v_lshrrev_b32 v16, 5, {vL}
    v_and_b32 v17, 31, {vL}
    s_lshl_b32 s50, {sJ}, 7
    s_add_u32 s50, s50, {sT}
    s_mul_i32 s50, s50, {KVB}
    s_add_u32 s50, s50, {OFF_KV}
    s_add_u32 s51, s50, {64*KVB}
    s_mov_b32 s52, {64*KVB}
    s_mov_b32 s53, {fbits(QSCALE)}
    v_lshlrev_b32 v18, 3, v17
    v_mad_u32_u24 v20, v16, s52, v18
    s_lshl_b32 s54, {sWV}, 8
    s_add_u32 s54, s54, {L_Q + 8192}
    v_lshl_add_u32 v21, v16, 10, v18
    v_add_u32 v21, s54, v21
    s_lshl_b32 s54, {sWV}, 10
    v_add_u32 v22, s54, {vL16}
    s_mul_i32 s54, {sWV}, 2560
    s_add_u32 s54, s54, {L_VT}
    v_mul_u32_u24 v23, 80, v17
    v_lshl_add_u32 v23, v16, 3, v23
    v_add_u32 v23, s54, v23""")
    for hd in range(2):
        for d in range(4): A(f"v_cvt_pk_bf16_f32 v{40+4*hd+d}, v{ACC+16*hd+8+2*d}, v{ACC+16*hd+9+2*d}")
        A(f"buffer_store_dwordx4 {vr(40+4*hd,4)}, {vL16}, {WS}, s{50+hd} offen sc1")
    for d in range(2): A(f"v_cvt_pk_bf16_f32 v{48+d}, v{ACC+32+4+2*d}, v{ACC+32+5+2*d}")
    A(f"buffer_store_dwordx2 {vr(48,2)}, v20, {WS}, s50 offen offset:{KV_R} sc1")
    for i in range(5):
        src = ACC + 32 + 8 + 4 * i
        for d in range(2): A(f"v_cvt_pk_bf16_f32 v{50+2*i+d}, v{src+2*d}, v{src+2*d+1}")
        A(f"ds_write_b64 v23, {vr(50+2*i,2)} offset:{16*i}")
    m_vw = A.lg
    A(f"""v_bfe_u32 v24, {vL}, 2, 2
    v_lshl_add_u32 v24, v16, 2, v24
    v_mul_u32_u24 v24, 80, v24
    v_add_u32 v24, s54, v24
    v_and_b32 v25, 1, {vL}
    v_lshlrev_b32 v25, 4, v25
    v_bfe_u32 v26, {vL}, 1, 1
    v_lshl_add_u32 v25, v26, 3, v25
    v_cmp_gt_u32 vcc, 16, v17
    v_add_u32 v26, 48, v25
    v_mul_u32_u24 v27, 320, v16
    v_cndmask_b32 v25, 32, v25, vcc
    v_cndmask_b32 v26, 40, v26, vcc
    v_add_u32 v25, v25, v24
    v_add_u32 v26, v26, v24
    v_lshl_add_u32 v27, v17, 4, v27
    v_add_u32 v28, 20, v16
    v_cmp_lt_u32 vcc, v17, v28
    v_mov_b32 v28, {OOB}
    v_mov_b32 v29, 0x3f803f80
    v_cndmask_b32 v27, v28, v27, vcc
    v_cmp_gt_u32 vcc, 20, v17""")
    A.wait_lg(m_vw)
    mk = []
    for hd in range(2):
        for kg in range(2):
            b = 128 + 8*hd + 4*kg
            for r_ in range(2): A(f"ds_read_b64_tr_b16 {vr(b+2*r_,2)}, v{25+hd} offset:{(16*kg+8*r_)*80}")
            mk.append(A.lg)
    for hd in range(2):
        for d in range(8): A(f"v_mul_f32 v{ACC+16*hd+d}, s53, v{ACC+16*hd+d}")
        for d in range(4): A(f"v_cvt_pk_bf16_f32 v{32+4*hd+d}, v{ACC+16*hd+2*d}, v{ACC+16*hd+1+2*d}")
    for d in range(4): A(f"v_mul_f32 v{ACC+32+d}, s53, v{ACC+32+d}")
    for d in range(2): A(f"v_cvt_pk_bf16_f32 v{30+d}, v{ACC+32+2*d}, v{ACC+32+1+2*d}")
    for hd in range(2):
        for kg in range(2):
            b = 128 + 8*hd + 4*kg
            A.wait_lg(mk[2*hd+kg])
            for d in range(4): A(f"v_cndmask_b32 v{b+d}, v29, v{b+d}, vcc")
            A(f"buffer_store_dwordx4 {vr(b,4)}, v27, {WS}, s{50+hd} offen offset:{(KV_V0, KV_V1)[kg]} sc1")
    for hd in range(2): A(f"ds_write_b128 v22, {vr(32+4*hd,4)} offset:{L_Q + 4096*hd}")
    A(f"ds_write_b64 v21, {vr(30,2)}")
    A(f"""s_lshl_b32 s50, {sJ}, 6
    s_add_u32 s50, s50, {sT}
    s_lshl_b32 s50, s50, 2
    s_add_u32 s50, s50, {OFF_FKV}""")
    set_flag(A, "s50", 16)
    A("s_waitcnt lgkmcnt(0)\ns_barrier")
    stamp(A, cfg, 8)

SF = 176
def s1(A, cfg):
    LR = A.label("s1R"); LD = A.label("s1D"); LJ = A.label("s1J")
    A(f"s_cmp_eq_u32 {sROLE}, 1\ns_cbranch_scc1 {LR}")
    gemv_issue(A, 32, 2560); m1 = A.vm
    gemv_issue(A, 64, 5120); m2 = A.vm
    A.wait_vm(m1); gemv_partial(A, 32, 44, L_RED)
    A.wait_vm(m2); gemv_partial(A, 64, 44, L_RED + 128)
    A("s_waitcnt lgkmcnt(0)\ns_barrier")
    L1 = A.label("s1w1")
    A(f"s_cmp_eq_u32 {sWV}, 1\ns_cbranch_scc1 {L1}\ns_cmp_lg_u32 {sWV}, 0\ns_cbranch_scc1 {LJ}")
    gemv_publish(A, 44, L_RED, 2560)
    A(f"s_branch {LJ}\n{L1}:")
    gemv_publish(A, 44, L_RED + 128, 5120)
    A(f"s_branch {LJ}")
    A(f"{LR}:")
    A(f"""s_cmp_ge_u32 {sU}, 328
    s_cbranch_scc1 {LJ}
    s_mul_i32 s53, {sWV}, 20480
    s_add_u32 s53, s53, {L_STG}
    s_cmp_ge_u32 {sU}, 192
    s_cbranch_scc1 {LD}""")
    A(f"""s_and_b32 s54, {sU}, 1
    s_bfe_u32 s55, {sU}, 0x20001
    s_lshr_b32 s56, {sU}, 3
    s_cmp_eq_u32 s54, 1
    s_cselect_b32 s32, s74, s72
    s_cselect_b32 s33, s75, s73
    s_mov_b32 s34, 1966080
    s_mul_i32 s52, s55, {160*3072}
    s_lshl_b32 s57, s56, 7
    s_add_u32 s52, s52, s57
    v_lshrrev_b32 v16, 3, {vL}
    v_and_b32 v17, 7, {vL}
    v_bfe_u32 v18, {vL}, 4, 1
    v_lshlrev_b32 v18, 2, v18
    v_xor_b32 v17, v17, v18
    v_mul_u32_u24 v16, 3072, v16
    v_lshl_add_u32 v16, v17, 4, v16""")
    for m in range(20):
        if m % 4 == 0: A(f"s_add_u32 m0, s53, {1024*m}")
        if m: A(f"s_add_u32 s52, s52, {24576 - 1024 + (4096 if m % 4 == 0 else 0)}")
        else: A("s_nop 0")
        A(f"buffer_load_dwordx4 v16, {GEN}, s52 offen offset:{1024*(m%4)} lds")
    A(f"""v_lshrrev_b32 v17, 5, {vL}
    v_lshlrev_b32 v17, 3, v17
    v_bfe_u32 v18, {vL}, 2, 2
    v_add_u32 v17, v17, v18
    v_lshlrev_b32 v17, 7, v17
    v_bfe_u32 v18, {vL}, 4, 1
    v_lshl_add_u32 v17, v18, 5, v17
    v_and_b32 v18, 1, {vL}
    v_lshl_add_u32 v17, v18, 4, v17
    v_bfe_u32 v18, {vL}, 1, 1
    v_lshl_add_u32 v17, v18, 3, v17
    v_bfe_u32 v18, {vL}, 3, 1
    v_lshl_add_u32 v17, v18, 6, v17
    v_xor_b32 v18, 64, v17
    v_add_u32 v17, s53, v17
    v_add_u32 v18, s53, v18""")
    for ntl in range(2):
        b, st = 44 + 2*ntl, 45 + 2*ntl
        A(f"""s_lshl_b32 s57, s56, 1
        s_add_u32 s57, s57, {ntl}
        s_mul_hi_u32 s58, s57, {(1<<32)//3+1}
        s_mul_i32 s59, s58, 3
        s_sub_u32 s57, s57, s59
        s_mul_i32 s58, s58, 245760
        s_lshl_b32 s59, s57, 11
        s_cmp_eq_u32 s57, 2
        s_cselect_b32 s59, {160*1024}, s59
        s_cselect_b32 s{st}, 2, 4
        s_lshl_b32 s{st}, s{st}, 10
        s_add_u32 s58, s58, s59
        s_lshl_b32 s59, s54, 10
        s_add_u32 s58, s58, s59
        s_mul_i32 s59, s55, 10
        s_mul_i32 s59, s59, s{st}
        s_add_u32 s58, s58, s59
        s_add_u32 s{b}, s58, {OFF_WGUF}""")
    A("s_waitcnt vmcnt(0)")
    mk = []
    def st_gu(f):
        A.wait_lg(mk[f]); ntl = f & 1
        A(f"buffer_store_dwordx4 {ar(SF+4*f,4)}, {vL16}, {WS}, s{44+2*ntl} offen sc1")
        A(f"s_add_u32 s{44+2*ntl}, s{44+2*ntl}, s{45+2*ntl}")
    for f in range(20):
        ks, ntl = f >> 1, f & 1
        for r_ in range(2): A(f"ds_read_b64_tr_b16 {ar(SF+4*f+2*r_,2)}, v{17+ntl} offset:{(16*ks+4*r_)*128}")
        mk.append(A.lg)
        if f >= 3: st_gu(f - 3)
    for f in range(17, 20): st_gu(f)
    A(f"""s_lshl_b32 s50, s56, 3
    s_lshl_b32 s51, s54, 2
    s_add_u32 s50, s50, s51
    s_add_u32 s50, s50, s55
    s_lshl_b32 s50, s50, 2
    s_add_u32 s50, s50, {OFF_FWG}""")
    set_flag(A, "s50", 16)
    A(f"s_branch {LJ}")
    A(f"{LD}:")
    A(f"""s_cmp_ge_u32 {sU}, 288
    s_cselect_b32 s32, s68, s76
    s_cselect_b32 s33, s69, s77
    s_cselect_b32 s54, 96, 0
    s_cselect_b32 s57, 20, 48
    s_mov_b32 s58, {OFF_WDF}
    s_cselect_b32 s58, {OFF_WOF}, s58
    s_mov_b32 s59, {OFF_FWD}
    s_cselect_b32 s59, {OFF_FWO}, s59
    s_cselect_b32 s63, 7, 8
    s_mul_i32 s34, s57, {32*1280}
    s_sub_u32 s54, {sU}, s54
    s_sub_u32 s54, s54, 192
    s_and_b32 s55, s54, 1
    s_lshr_b32 s54, s54, 1
    s_mul_i32 s52, s54, {32*1280}
    s_mul_i32 s56, s55, 640
    s_add_u32 s52, s52, s56""")
    for m in range(5):
        A(f"""v_add_u32 v{16+m}, {64*m}, {vL}
        v_mul_u32_u24 v21, 1639, v{16+m}
        v_lshrrev_b32 v21, 16, v21
        v_mul_u32_u24 v21, 640, v21
        v_lshl_add_u32 v{16+m}, v{16+m}, 4, v21""")
    for m in range(20):
        A(f"s_add_u32 m0, s53, {1024*m}")
        if m and m % 5 == 0: A(f"s_add_u32 s52, s52, {8*1280}")
        else: A("s_nop 0")
        A(f"buffer_load_dwordx4 v{16+m%5}, {GEN}, s52 offen lds")
    A(f"""v_lshrrev_b32 v21, 4, {vL}
    v_lshlrev_b32 v21, 3, v21
    v_bfe_u32 v22, {vL}, 2, 2
    v_add_u32 v21, v21, v22
    v_mul_u32_u24 v21, 640, v21
    v_add_u32 v21, s53, v21
    v_and_b32 v23, 3, {vL}
    v_lshl_add_u32 v22, v23, 3, v21
    v_lshl_add_u32 v21, v23, 4, v21
    v_add_u32 v23, 0x1000, {vL16}
    s_lshl_b32 s56, s55, 2
    s_mul_i32 s56, s56, s57
    s_add_u32 s56, s56, s54
    s_mul_i32 s56, s56, 5120
    s_add_u32 s56, s56, s58
    s_mul_i32 s57, s57, 5120
    s_waitcnt vmcnt(0)""")
    mk = []
    def st_d(f):
        A.wait_lg(mk[f]); nt = f % 5
        if nt < 4: A(f"buffer_store_dwordx4 {ar(SF+4*f,4)}, {vL16}, {WS}, s56 offen offset:{1024*nt} sc1")
        else: A(f"buffer_store_dwordx4 {ar(SF+4*f,4)}, v23, {WS}, s56 offen sc1\ns_add_u32 s56, s56, s57")
    for f in range(20):
        cbl, nt = f // 5, f % 5
        for r_ in range(2):
            im = r_*2560 + cbl*160 + ((nt >> 1)*64 + (nt & 1)*8 if nt < 4 else 128)
            A(f"ds_read_b64_tr_b16 {ar(SF+4*f+2*r_,2)}, v{21 if nt < 4 else 22} offset:{im}")
        mk.append(A.lg)
        if f >= 3: st_d(f - 3)
    for f in range(17, 20): st_d(f)
    A(f"""s_lshl_b32 s55, s55, s63
    s_lshl_b32 s54, s54, 2
    s_add_u32 s50, s54, s55
    s_add_u32 s50, s50, s59""")
    set_flag(A, "s50", 16)
    A(f"{LJ}:")
    stamp(A, cfg, 9)


aO, aQ, aQR, aKV = 0, 64, 80, (84, 110)
vS, vC, vP = (64, 96), (128, 160), 48
vKR, vV = "v16", "v17"
sK0, sK1, sKB, sFB, sIT = "s44", "s45", "s46", "s47", "s48"
def kvreg(b, what):
    o = {"k0": 0, "k1": 4, "kr": 8, "v00": 10, "v01": 14, "v10": 18, "v11": 22}[what]
    return ar(aKV[b] + o, 2 if what == "kr" else 4)
def kv_loads(A, b, konly=False):
    A(f"buffer_load_dwordx2 {kvreg(b,'kr')}, {vKR}, {WS}, {sK0} offen offset:{KV_R} sc1")
    A(f"buffer_load_dwordx4 {kvreg(b,'k0')}, {vL16}, {WS}, {sK0} offen sc1")
    if not konly:
        A(f"buffer_load_dwordx4 {kvreg(b,'v00')}, {vV}, {WS}, {sK0} offen offset:{KV_V0} sc1")
        A(f"buffer_load_dwordx4 {kvreg(b,'v01')}, {vV}, {WS}, {sK0} offen offset:{KV_V1} sc1")
    A(f"buffer_load_dwordx4 {kvreg(b,'k1')}, {vL16}, {WS}, {sK1} offen sc1")
    if not konly:
        A(f"buffer_load_dwordx4 {kvreg(b,'v10')}, {vV}, {WS}, {sK1} offen offset:{KV_V0} sc1")
        A(f"buffer_load_dwordx4 {kvreg(b,'v11')}, {vV}, {WS}, {sK1} offen offset:{KV_V1} sc1")
    A(f"s_add_u32 {sK0}, {sK0}, {2*KVB}\ns_add_u32 {sK1}, {sK1}, {2*KVB}")
def qk_rem(b, kt, qp, c):
    return f"{MF2B} {vr(vS[qp],32)}, {kvreg(b,'kr')}, {ar(aQR+2*qp,2)}, {c} cbsz:1 abid:{kt}"
def qk_main(b, kt, qp, t):
    d = vr(vS[qp] + 16*t, 16)
    return f"{MF32} {d}, {kvreg(b,'k%d'%kt)}, {ar(aQ+4*(2*qp+t),4)}, {d}"
def pv(b, kt, qp, g):
    d = ar(aO + 16*(2*qp + (g >> 1)), 16)
    return f"{MF32} {d}, {kvreg(b,'v%d%d'%(kt, g & 1))}, {vr(vP+4*g,4)}, {d}"

def att_slot(A, n):
    b, kt, qp = n >> 2, (n >> 1) & 1, n & 1
    p = (n - 1) % 8; pb, pkt, pqp = p >> 2, (p >> 1) & 1, p & 1
    x = (n + 1) % 8; xb, xkt, xqp = x >> 2, (x >> 1) & 1, x & 1
    for g in range(4):
        s0 = vS[qp] + 8*g
        E = [f"v_exp_f32 v{s0+i}, v{s0+i}" for i in range(8)]
        C = [f"v_cvt_pk_bf16_f32 v{vP+4*g+i}, v{s0+2*i}, v{s0+2*i+1}" for i in range(4)]
        prev = pv(pb, pkt, pqp, 3) if g == 0 else pv(b, kt, qp, g - 1)
        if g == 0:
            A("\n".join(E[0:2])); A(prev)
            if n % 4 == 0: kv_loads(A, pb)
            if n % 4 == 3: A("s_waitcnt vmcnt(0)")
            A("\n".join(E[2:5])); A(qk_rem(xb, xkt, xqp, vr(vC[xqp], 32)))
            A("\n".join(E[5:8] + C))
        elif g == 1:
            A("\n".join(E[0:3])); A(prev)
            if n == 7: A(f"s_sub_u32 {sIT}, {sIT}, 1\ns_cmp_lg_u32 {sIT}, 0")
            A("\n".join(E[3:8] + C))
        else:
            A("\n".join(E[0:2])); A(prev)
            A("\n".join(E[2:5])); A(qk_main(xb, xkt, xqp, g - 2))
            A("\n".join(E[5:8] + C))

def p2(A, cfg):
    LP = A.label("attpass"); LL = A.label("attloop"); LF = A.label("attfb"); LOK = A.label("attok")
    A(f"""v_lshrrev_b32 v18, 5, {vL}
    v_and_b32 v19, 31, {vL}
    s_mov_b32 s50, {KVB}
    v_lshlrev_b32 v20, 3, v19
    v_mad_u32_u24 {vKR}, v18, s50, v20
    v_mul_u32_u24 v21, 320, v18
    v_lshl_add_u32 v21, v19, 4, v21
    v_and_b32 v22, 27, v19
    v_cmp_eq_u32 vcc, 24, v22
    v_mov_b32 v22, {OOB}
    v_mov_b32 v23, 640
    v_cndmask_b32 v22, v22, v23, vcc
    v_cmp_gt_u32 vcc, 20, v19
    s_and_b32 s51, {sWV}, 1
    s_lshr_b32 s52, {sWV}, 1
    v_cndmask_b32 {vV}, v22, v21, vcc
    s_lshl_b32 s53, {sJ}, 1
    s_add_u32 s53, s53, s51
    s_mul_i32 s53, s53, {64*KVB}
    s_add_u32 s53, s53, {OFF_KV}
    s_mul_i32 s54, s52, {32*KVB}
    s_add_u32 {sKB}, s53, s54
    s_mov_b32 {sFB}, 0
    s_lshl_b32 s54, s51, 12
    s_lshl_b32 s55, s52, 11
    s_add_u32 s54, s54, s55
    v_add_u32 v24, s54, {vL16}
    v_xor_b32 v25, 0x800, v24
    s_lshr_b32 s54, s54, 2
    v_lshlrev_b32 v26, 3, {vL}
    v_add_u32 v26, s54, v26
    v_xor_b32 v27, 0x200, v26
    ds_read_b128 {ar(aQ,4)}, v24 offset:{L_Q}
    ds_read_b128 {ar(aQ+4,4)}, v24 offset:{L_Q+1024}
    ds_read_b128 {ar(aQ+8,4)}, v25 offset:{L_Q}
    ds_read_b128 {ar(aQ+12,4)}, v25 offset:{L_Q+1024}
    ds_read_b64 {ar(aQR,2)}, v26 offset:{L_Q+8192}
    ds_read_b64 {ar(aQR+2,2)}, v27 offset:{L_Q+8192}
    v_lshlrev_b32 v20, 2, {vL}
    s_lshl_b32 s50, {sJ}, 8
    s_add_u32 s50, s50, {OFF_FKV}
    v_lshlrev_b32 v18, 9, v18
    v_mov_b32 v19, 0""")
    poll(A, [("v20", "s50", 0)], 21, "pkv")
    A("s_barrier")
    stamp(A, cfg, 10)
    A(f"""buffer_load_dwordx4 v[32:35], v18, {WS}, s53 offen sc1
    buffer_load_dwordx2 v[36:37], v19, {WS}, s53 offen offset:{KV_R} sc1""")
    m0_ = A.vm
    A(f"s_mov_b32 {sK0}, {sKB}\ns_add_u32 {sK1}, {sKB}, {KVB}")
    kv_loads(A, 0)
    A.wait(vm=m0_, lg=A.lg)
    for d in range(6): A(f"v_xor_b32 v{32+d}, 0x80008000, v{32+d}")
    A("s_nop 1")
    for qp in range(2): A(f"{MF2B} {vr(vC[qp],32)}, v[36:37], {ar(aQR+2*qp,2)}, 0")
    A.nop(18)
    for qp in range(2):
        for t in range(2):
            d = vr(vC[qp] + 16*t, 16)
            A(f"{MF32} {d}, v[32:35], {ar(aQ+4*(2*qp+t),4)}, {d}")
    A(f"{LP}:")
    for d in range(4): A(f"v_mov_b32 v{vP+12+d}, 0")
    for d in range(4): A(f"v_accvgpr_write_b32 a{aKV[1]+22+d}, 0")
    A(f"s_mov_b32 {sIT}, 8\ns_nop 0")
    for t in range(4): A(f"{MF32} {ar(aO+16*t,16)}, {vr(vP+12,4)}, {vr(vP+12,4)}, 0")
    A("s_waitcnt vmcnt(0)")
    A.nop(4)
    A(qk_rem(0, 0, 0, vr(vC[0], 32)))
    A.nop(18)
    A(qk_main(0, 0, 0, 0)); A(qk_main(0, 0, 0, 1))
    A.nop(11)
    stamp(A, cfg, 11)
    A(".p2align 3")
    A(f"{LL}:")
    t0 = A.loop_begin()
    for n in range(8): att_slot(A, n)
    A(f"s_cbranch_scc1 {LL}")
    A.loop_end(t0)
    A("s_nop 0")
    A(pv(1, 1, 1, 3))
    stamp(A, cfg, 12)
    A(f"""s_lshl_b32 s50, {sWV}, 13
    s_add_u32 s50, s50, {L_MRG}
    v_add_u32 v18, s50, {vL16}
    s_xor_b32 s51, {sWV}, 2
    s_lshl_b32 s51, s51, 13
    s_add_u32 s51, s51, {L_MRG}
    v_add_u32 v19, s51, {vL16}
    s_lshl_b32 s52, {sWV}, 2
    s_add_u32 s52, s52, {L_FLAG}
    v_mov_b32 v20, s52
    v_mov_b32 v21, {L_FLAG}
    s_mov_b32 s53, {fbits(2.0**60) if not cfg.force_fallback else fbits(1e-30)}""")
    for d in range(13): A(f"v_accvgpr_read_b32 v{64+d}, a{aO+d}")
    for q in range(4): A(f"ds_write_b128 v18, {ar(aO+32+4*q,4)} offset:{1024*q}")
    for d in range(13): A(f"v_accvgpr_read_b32 v{80+d}, a{aO+16+d}")
    for q in range(4): A(f"ds_write_b128 v18, {ar(aO+48+4*q,4)} offset:{4096+1024*q}")
    A(f"""v_accvgpr_read_b32 v22, a{aO+32+12}
    v_accvgpr_read_b32 v23, a{aO+48+12}
    v_cmp_nge_f32 vcc, s53, v76
    v_cmp_nge_f32 s[60:61], s53, v92
    s_or_b64 vcc, vcc, s[60:61]
    v_cmp_nge_f32 s[60:61], s53, v22
    s_or_b64 vcc, vcc, s[60:61]
    v_cmp_nge_f32 s[60:61], s53, v23
    s_or_b64 vcc, vcc, s[60:61]
    s_cselect_b32 s54, 1, 0
    v_mov_b32 v22, s54
    ds_write_b32 v20, v22
    s_waitcnt vmcnt(0) lgkmcnt(0)
    s_barrier
    ds_read_b128 v[24:27], v21""")
    mf = A.lg
    mk = []
    for t in range(2):
        for q in range(4): A(f"ds_read_b128 {vr(96+16*t+4*q,4)}, v19 offset:{4096*t+1024*q}")
        mk.append(A.lg)
    A(f"""v_bfe_u32 v28, {vL}, 4, 1
    v_mul_u32_u24 v28, 20480, v28
    v_and_b32 v29, 15, {vL}
    v_lshl_add_u32 v28, v29, 4, v28
    v_lshrrev_b32 v29, 5, {vL}
    v_cmp_eq_u32 vcc, 0, v29
    v_lshl_add_u32 v29, v29, 8, v28
    v_mov_b32 v30, {OOB}
    s_lshr_b32 s52, {sWV}, 1
    v_cndmask_b32 v28, v30, v28, vcc
    s_lshl_b32 s50, {sRB}, 1
    s_add_u32 s55, s50, s52
    s_mul_i32 s50, s55, {4*20480}
    s_mul_i32 s51, {sJ}, 1280
    s_add_u32 s50, s50, s51
    s_add_u32 s50, s50, {OFF_O}
    s_and_b32 s56, {sWV}, 1
    s_lshl_b32 s51, s56, 3
    s_add_u32 s51, s51, s50
    s_mul_i32 s52, s56, 768
    s_add_u32 s50, s50, s52""")
    A.wait_lg(mf)
    A(f"""v_or3_b32 v24, v24, v25, v26
    v_or_b32 v24, v24, v27
    s_nop 0
    v_readfirstlane_b32 s54, v24
    s_nop 0
    s_cmp_gt_u32 s54, {sFB}
    s_cbranch_scc1 {LF}""")
    for t in range(2):
        o, r_ = 64 + 16*t, 96 + 16*t
        A.wait_lg(mk[t])
        A(f"v_add_f32 v{o+12}, v{o+12}, v{r_+12}\nv_rcp_f32 v{o+12}, v{o+12}")
        for d in range(0, 12, 2): A(f"v_pk_add_f32 {vr(o+d,2)}, {vr(o+d,2)}, {vr(r_+d,2)}")
        for d in range(0, 12, 2): A(f"v_pk_mul_f32 {vr(o+d,2)}, {vr(o+d,2)}, {vr(o+12,2)} op_sel_hi:[1,0]")
        for d in range(6): A(f"v_cvt_pk_bf16_f32 v{32+8*t+d}, v{o+2*d}, v{o+2*d+1}")
        A(f"buffer_store_dwordx4 {vr(32+8*t,4)}, v29, {WS}, s50 offen sc1")
        A(f"buffer_store_dwordx2 {vr(36+8*t,2)}, v28, {WS}, s51 offen offset:512 sc1")
        if t == 0: A(f"s_add_u32 s50, s50, {2*20480}\ns_add_u32 s51, s51, {2*20480}")
    A(f"""s_lshl_b32 s50, s55, 8
    s_lshl_b32 s51, {sJ}, 1
    s_add_u32 s51, s51, s56
    s_lshl_b32 s51, s51, 2
    s_add_u32 s50, s50, s51
    s_add_u32 s50, s50, {OFF_FO}
    v_cmp_gt_u32 vcc, 2, {vL}
    v_lshlrev_b32 v31, 7, {vL}
    s_waitcnt vmcnt(0)
    v_cndmask_b32 v31, v30, v31, vcc
    buffer_store_dword {vTAG}, v31, {WS}, s50 offen sc1
    s_branch {LOK}""")
    A(f"{LF}:")
    LM = A.label("attmax")
    A(f"""s_waitcnt lgkmcnt(0)
    s_mov_b32 {sFB}, 1
    s_mov_b32 {sIT}, 16
    s_mov_b32 {sK0}, {sKB}
    s_add_u32 {sK1}, {sKB}, {KVB}""")
    for t in range(4): A(f"v_mov_b32 v{32+t}, 0xff800000")
    A(f"{LM}:")
    t0 = A.loop_begin()
    kv_loads(A, 0, True)
    A("s_waitcnt vmcnt(0)")
    for kt in range(2):
        for qp in range(2): A(qk_rem(0, kt, qp, "0"))
        A.nop(18)
        for qp in range(2):
            for t in range(2): A(qk_main(0, kt, qp, t))
        A.nop(12)
        for t in range(4):
            for d in range(0, 16, 2): A(f"v_max3_f32 v{32+t}, v{64+16*t+d}, v{65+16*t+d}, v{32+t}")
    A(f"s_sub_u32 {sIT}, {sIT}, 1\ns_cmp_lg_u32 {sIT}, 0\ns_cbranch_scc1 {LM}")
    A.loop_end(t0)
    for t in range(4): A(f"v_mov_b32 v{36+t}, v{32+t}")
    A("s_nop 1")
    for t in range(4): A(f"v_permlane32_swap_b32 v{32+t}, v{36+t}")
    for t in range(4): A(f"v_max_f32 v{32+t}, v{32+t}, v{36+t}")
    A(f"""s_barrier
    ds_write_b128 v18, v[32:35]
    s_waitcnt lgkmcnt(0)
    s_barrier
    ds_read_b128 v[36:39], v19
    s_mov_b32 {sK0}, {sKB}
    s_add_u32 {sK1}, {sKB}, {KVB}""")
    kv_loads(A, 0)
    A("s_waitcnt lgkmcnt(0)\ns_barrier")
    for t in range(4): A(f"v_max_f32 v{32+t}, v{32+t}, v{36+(t^2)}")
    for t in range(4):
        for d in range(16): A(f"v_sub_f32 v{vC[0]+16*t+d}, 0, v{32+t}")
    A(f"s_branch {LP}")
    A.trace.append("s_waitcnt vmcnt(0) lgkmcnt(0)")
    A(f"{LOK}:")
    stamp(A, cfg, 13)


T3, T4, T5, TEND = 0, 7, 22, 37
sR3, sR4, sR5 = "s42", "s43", "s44"
vX1 = 232
vEXT = 160
class Ring:
    def __init__(self): self.mark = {}; self.next = 0
    def issue(self, A, upto):
        while self.next <= min(upto, TEND - 1):
            n = self.next
            sr = sR3 if n < T4 else sR4 if n < T5 else sR5
            A(f"s_add_u32 m0, {sWB}, {(n % 9) * 16384}")
            va = "v15" if n == T4 - 1 else vL16
            A("s_nop 0")
            for t in range(4): A(f"buffer_load_dwordx4 {va}, {WS}, {sr} offen offset:{1024*t} sc1 lds")
            A(f"s_add_u32 {sr}, {sr}, 16384")
            self.mark[n] = A.vm; self.next += 1
    def addr(self, n0, f): return lds_addr(((n0 * 16 + f) % 144) * 1024)
RG = None

def s2(A, cfg):
    global RG
    RG = Ring()
    mod_gather(A, 640, 1280, L_MOD2, 32)
    A(f"""v_lshlrev_b32 v16, 2, {vL}
    s_lshr_b32 s50, {sCB}, 2
    s_lshl_b32 s51, s50, 8
    s_add_u32 s51, s51, {OFF_FWD}
    s_mul_i32 s52, {sJ}, 3
    s_lshr_b32 s52, s52, 1
    s_lshl_b32 s45, s52, 5
    s_add_u32 s52, s45, {OFF_FWG - 48*4}
    v_add_u32 v17, s51, v16
    v_add_u32 v18, s52, v16
    v_cmp_gt_u32 vcc, 48, {vL}
    v_min_u32 v19, 19, {vL}
    v_lshlrev_b32 v19, 2, v19
    v_cndmask_b32 v17, v18, v17, vcc
    s_lshl_b32 s50, s50, 7
    s_add_u32 s50, s50, {OFF_FWO}
    s_mul_i32 {sR3}, {sCB}, 102400
    s_add_u32 {sR3}, {sR3}, {sWB}
    s_add_u32 {sR3}, {sR3}, {OFF_WOF}
    s_mul_i32 {sR4}, {sJ}, 245760
    s_add_u32 {sR4}, {sR4}, {sWB}
    s_add_u32 {sR4}, {sR4}, {OFF_WGUF}
    s_mul_i32 {sR5}, {sCB}, 245760
    s_add_u32 {sR5}, {sR5}, {sWB}
    s_add_u32 {sR5}, {sR5}, {OFF_WDF}
    s_cmp_eq_u32 {sWV}, 0
    s_cselect_b32 s53, 0, {OOB}
    v_or_b32 v15, s53, {vL16}""")
    poll(A, [("v17", "0", 0), ("v19", "s50", 0)], 20, "pside")
    A("s_waitcnt lgkmcnt(0)\ns_barrier")
    RG.issue(A, 8)
    stamp(A, cfg, 14)
    LJ = A.label("s2J")
    A(f"""s_cmp_lg_u32 {sROLE}, 1
    s_cbranch_scc1 {LJ}
    s_cmp_ge_u32 {sU}, 192
    s_cbranch_scc1 {LJ}
    s_and_b32 s54, {sU}, 1
    s_bfe_u32 s55, {sU}, 0x20001
    s_lshr_b32 s56, {sU}, 3
    v_and_b32 v16, 1, {vL}
    v_mul_u32_u24 v16, 1280, v16
    v_lshrrev_b32 v17, 5, {vL}
    v_lshlrev_b32 v18, 4, v17
    v_sub_u32 v16, v18, v16
    s_mul_i32 s50, s55, 320
    s_add_u32 s50, s50, {L_MOD2 + 2560}
    v_add_u32 v16, s50, v16""")
    for ks in range(10): A(f"ds_read_b128 {vr(96+4*ks,4)}, v16 offset:{32*ks}")
    A(f"""v_cmp_eq_u32 vcc, 0, v17
    v_lshlrev_b32 v18, 5, {vL}
    v_mov_b32 v19, {OOB}
    s_mul_i32 s50, s54, 48
    v_cndmask_b32 v18, v19, v18, vcc
    s_lshl_b32 s51, s56, 1
    s_add_u32 s50, s50, s51
    s_lshl_b32 s50, s50, 10
    s_lshl_b32 s51, s55, 3
    s_add_u32 s50, s50, s51
    s_add_u32 s50, s50, {OFF_CSB}
    s_waitcnt lgkmcnt(0)""")
    for f in range(20):
        ks, ntl = f >> 1, f & 1
        d = vr(64 + 16*ntl, 16)
        A(f"{MF32} {d}, {vr(96+4*ks,4)}, {ar(SF+4*f,4)}, {d if ks else '0'}")
    A.nop(12)
    for ntl in range(2): A(f"buffer_store_dwordx2 {vr(64+16*ntl,2)}, v18, {WS}, s50 offen offset:{1024*ntl} sc1")
    A(f"""s_lshl_b32 s50, s56, 3
    s_lshl_b32 s51, s54, 2
    s_add_u32 s50, s50, s51
    s_add_u32 s50, s50, s55
    s_lshl_b32 s50, s50, 2
    s_add_u32 s50, s50, {OFF_FCS}""")
    set_flag(A, "s50", 16)
    A(f"{LJ}:")

def gemm16(A, cfg, n0, KS, tok, dma_ahead):
    WF, ACC = 24, 64
    rd = {}
    def wread(f):
        if f % 16 == 0 and f:
            m = n0 + f // 16
            A.wait_vm(RG.mark[m]); A("s_barrier")
            if dma_ahead: RG.issue(A, m + 7)
        va, im = RG.addr(n0, f)
        A(f"ds_read_b128 {vr(WF+4*(f%10),4)}, {va} offset:{im}")
        rd[f] = A.lg
    for f in range(10): wread(f)
    for s in range(KS):
        for t in range(5):
            f = 5*s + t
            if t == 0: A.wait(vm=tok[s], lg=rd[f+1])
            elif t == 2: A.wait_lg(rd[f+2])
            d = vr(ACC+4*t, 4)
            A(f"{MF16} {d}, {vr(WF+4*(f%10),4)}, {ar(4*s,4)}, {d if s else '0'}")
            if f + 10 < 5*KS: wread(f + 10)

def tile_addr(A):
    A(f"""v_and_b32 v20, 15, {vL}
    v_lshrrev_b32 v21, 4, {vL}
    v_mul_u32_u24 v16, 1280, v20
    v_lshl_add_u32 v17, v21, 3, v16
    v_lshl_add_u32 v16, v21, 4, v16
    s_mul_i32 s47, {sCB}, 160
    s_mul_i32 s46, {sTT}, 20480
    s_add_u32 s46, s46, s47
    s_add_u32 s47, s47, {L_MOD2}
    v_lshlrev_b32 v18, 4, v21
    v_lshlrev_b32 v19, 3, v21
    v_add_u32 v18, s47, v18
    v_add_u32 v19, s47, v19""")
def vec_read(A, dst, vec):
    A(f"""ds_read_b128 {vr(dst,4)}, v18 offset:{1280*vec}
    ds_read_b128 {vr(dst+4,4)}, v18 offset:{1280*vec+64}
    ds_read_b64 {vr(dst+8,2)}, v19 offset:{1280*vec+128}""")

def p3(A, cfg):
    tile_addr(A)
    A(f"""buffer_load_dwordx4 v[96:99], v16, {XS}, s46 offen
    buffer_load_dwordx4 v[100:103], v16, {XS}, s46 offen offset:64
    buffer_load_dwordx2 v[104:105], v17, {XS}, s46 offen offset:128""")
    vec_read(A, 108, 0); vec_read(A, 120, 2)
    A(f"""v_and_b32 v22, 31, {vL}
    v_lshlrev_b32 v22, 2, v22
    s_lshr_b32 s48, {sTT}, 1
    s_lshl_b32 s50, s48, 7
    s_add_u32 s50, s50, {OFF_FO}
    s_mul_i32 s51, {sTT}, 20480
    s_add_u32 s51, s51, {OFF_O}""")
    poll(A, [("v22", "s50", 0)], 23, "po")
    stamp(A, cfg, 15)
    tok = []
    for s in range(20):
        if s and s % 4 == 0: A("s_add_u32 s51, s51, 4096")
        A(f"buffer_load_dwordx4 {ar(4*s,4)}, {vL16}, {WS}, s51 offen offset:{1024*(s%4)} sc1")
        tok.append(A.vm)
    A("s_waitcnt lgkmcnt(0)")
    for d in range(10):
        unpack(A, vX1+2*d, vX1+2*d+1, 96+d)
        unpack(A, 136+2*d, 137+2*d, 108+d)
        unpack(A, 160+2*d, 161+2*d, 120+d)
    A(f"""v_lshlrev_b32 v22, 4, v20
    v_lshl_add_u32 v23, v21, 9, v22
    v_and_b32 v96, 1, v21
    v_lshl_add_u32 v22, v96, 3, v22
    v_lshrrev_b32 v96, 1, v21
    v_lshl_add_u32 v22, v96, 9, v22
    v_add_u32 v22, 0x1000, v22
    v_mov_b32 v97, v22
    v_mov_b32 v98, v23
    v_cmp_eq_u32 vcc, 0, v21
    v_lshlrev_b32 v99, 6, v20
    v_mov_b32 v96, {OOB}
    s_mul_i32 s52, s48, 40960
    v_cndmask_b32 v99, v96, v99, vcc
    s_and_b32 s49, {sTT}, 1
    s_lshl_b32 s53, s49, 8
    s_add_u32 s52, s52, s53
    s_mul_i32 s53, {sCB}, 5120
    s_add_u32 s52, s52, s53
    s_add_u32 s52, s52, {OFF_X1S}
    s_lshl_b32 s53, {sTT}, 10
    s_lshl_b32 s54, {sCB}, 3
    s_add_u32 s53, s53, s54
    s_add_u32 s53, s53, {OFF_ST}
    s_barrier""")
    gemm16(A, cfg, T3, 20, tok, False)
    stamp(A, cfg, 16)
    A.nop(8)
    for d in range(0, 20, 2): A(f"v_pk_fma_f32 {vr(vX1+d,2)}, {vr(64+d,2)}, {vr(136+d,2)}, {vr(vX1+d,2)}")
    for d in range(0, 20, 2): A(f"v_pk_mul_f32 {vr(160+d,2)}, {vr(160+d,2)}, {vr(vX1+d,2)}")
    for d in range(10): A(f"v_cvt_pk_bf16_f32 v{100+d}, v{160+2*d}, v{161+2*d}")
    A(f"""buffer_store_dwordx4 v[100:103], v98, {WS}, s52 offen sc1
    buffer_store_dwordx4 v[104:107], v98, {WS}, s52 offen offset:2048 sc1
    buffer_store_dwordx2 v[108:109], v97, {WS}, s52 offen sc1
    v_pk_add_f32 v[112:113], {vr(vX1,2)}, {vr(vX1+2,2)}
    v_pk_mul_f32 v[114:115], {vr(vX1,2)}, {vr(vX1,2)}""")
    for d in range(2, 20, 2):
        if d > 2: A(f"v_pk_add_f32 v[112:113], v[112:113], {vr(vX1+d,2)}")
        A(f"v_pk_fma_f32 v[114:115], {vr(vX1+d,2)}, {vr(vX1+d,2)}, v[114:115]")
    A("""v_add_f32 v112, v112, v113
    v_add_f32 v113, v114, v115
    v_mov_b32 v114, v112
    v_mov_b32 v115, v113
    s_nop 1
    v_permlane16_swap_b32 v112, v114
    v_permlane16_swap_b32 v113, v115
    v_add_f32 v112, v112, v114
    v_add_f32 v113, v113, v115
    v_mov_b32 v114, v112
    v_mov_b32 v115, v113
    s_nop 1
    v_permlane32_swap_b32 v112, v114
    v_permlane32_swap_b32 v113, v115
    v_add_f32 v112, v112, v114
    v_add_f32 v113, v113, v115""")
    A(f"""buffer_store_dwordx2 v[112:113], v99, {WS}, s53 offen sc1
    s_lshl_b32 s50, s48, 7
    s_lshl_b32 s51, {sCB}, 1
    s_add_u32 s51, s51, s49
    s_lshl_b32 s51, s51, 2
    s_add_u32 s50, s50, s51
    s_add_u32 s50, s50, {OFF_FX1}""")
    set_flag(A, "s50", 22)
    stamp(A, cfg, 17)

def p4(A, cfg):
    WF, ACC = 32, 64
    A(f"""v_and_b32 v16, 15, {vL}
    v_lshlrev_b32 v16, 2, v16
    s_add_u32 s50, s45, {OFF_FCS}
    v_and_b32 v17, 31, {vL}
    v_lshrrev_b32 v18, 5, {vL}
    v_lshlrev_b32 v19, 5, v17
    v_lshl_add_u32 v19, v18, 4, v19
    s_mul_i32 s51, {sJ}, 3072
    s_add_u32 s51, s51, {OFF_CSB}
    s_add_u32 s52, s51, {48*1024}""")
    poll(A, [("v16", "s50", 0)], 20, "pcs")
    for nt in range(6): A(f"buffer_load_dwordx4 {vr(96+4*nt,4)}, v19, {WS}, s{51+(nt&1)} offen offset:{1024*(nt>>1)} sc1")
    mcs = A.vm
    A("s_barrier")
    RG.issue(A, T4 + 8)
    A.wait_vm(mcs)
    for nt in range(6):
        b, e = 96 + 4*nt, vEXT + 4*nt
        A(f"""v_add_f32 v{b}, v{b}, v{b+2}
        v_add_f32 v{b+1}, v{b+1}, v{b+3}
        v_cvt_pk_bf16_f32 v{e}, v{b}, v{b}
        v_lshlrev_b32 v{b+2}, 16, v{e}
        v_sub_f32 v{b+2}, v{b}, v{b+2}
        v_cvt_pk_bf16_f32 v{e+1}, v{b+2}, v{b+1}
        v_and_b32 v{b+3}, 0xffff0000, v{e+1}
        v_sub_f32 v{b+3}, v{b+1}, v{b+3}
        v_cvt_pk_bf16_f32 v{e+2}, v{b+1}, v{b+3}
        v_mov_b32 v{e+3}, 0""")
    A(f"""s_lshl_b32 s50, {sT}, 7
    s_add_u32 s50, s50, {OFF_FX1}
    v_lshlrev_b32 v19, 1, v19
    s_lshl_b32 s51, {sT}, 11
    s_add_u32 s51, s51, {OFF_ST}
    s_mul_i32 s52, {sT}, 40960
    s_add_u32 s52, s52, {OFF_X1S}""")
    poll(A, [("v16", "s50", 0)], 20, "px1")
    stamp(A, cfg, 18)
    A(f"""buffer_load_dwordx4 v[96:99], v19, {WS}, s51 offen sc1
    buffer_load_dwordx4 v[100:103], v19, {WS}, s51 offen offset:16 sc1""")
    mst = A.vm
    tok = []
    for s in range(40):
        if s and s % 4 == 0: A("s_add_u32 s52, s52, 4096")
        A(f"buffer_load_dwordx4 {ar(4*s,4)}, {vL16}, {WS}, s52 offen offset:{1024*(s%4)} sc1")
        tok.append(A.vm)
    A("s_barrier")
    order = wgu_order()
    rd = {}
    def wread(f):
        if f % 16 == 0 and f:
            m = T4 + f // 16
            A.wait_vm(RG.mark[m]); A("s_barrier")
            RG.issue(A, m + 7)
        va, im = RG.addr(T4, f)
        A(f"ds_read_b128 {vr(WF+4*(f%4),4)}, {va} offset:{im}")
        rd[f] = A.lg
    for f in range(4): wread(f)
    A.wait_vm(mst)
    e = vEXT + 24
    K0, K1, SG = 190, 192, 194
    c0 = -2 * 0.7978845608028654 * LOG2E
    A(f"""v_pk_add_f32 v[96:97], v[96:97], v[98:99]
    v_pk_add_f32 v[100:101], v[100:101], v[102:103]
    v_pk_add_f32 v[96:97], v[96:97], v[100:101]
    v_mov_b32 v98, v96
    v_mov_b32 v99, v97
    s_nop 1
    v_permlane32_swap_b32 v96, v98
    v_permlane32_swap_b32 v97, v99
    v_add_f32 v96, v96, v98
    v_add_f32 v97, v97, v99
    v_mul_f32 v96, {fbits(-1/640)}, v96
    v_mul_f32 v97, {fbits(1/640)}, v97
    v_fma_f32 v97, -v96, v96, v97
    v_max_f32 v97, 0, v97
    v_add_f32 v{SG}, {fbits(1e-5)}, v97
    v_rsq_f32 v98, v{SG}
    s_nop 0
    v_mul_f32 v97, v{SG}, v98
    v_mul_f32 v{K0}, {fbits(c0)}, v98
    v_mul_f32 v99, v98, v98
    v_mul_f32 v{K1}, {fbits(0.044715)}, v99
    v_mul_f32 v{K1}, v{K1}, v{K0}
    v_cvt_pk_bf16_f32 v{e+1}, v96, v97
    v_lshlrev_b32 v98, 16, v{e+1}
    v_and_b32 v99, 0xffff0000, v{e+1}
    v_sub_f32 v98, v96, v98
    v_sub_f32 v99, v97, v99
    v_cvt_pk_bf16_f32 v{e}, v96, v98
    v_cvt_pk_bf16_f32 v{e+2}, v99, v97
    v_mov_b32 v{e+3}, 0
    s_nop 1""")
    for nt in range(6): A(f"{MF32} {vr(ACC+16*nt,16)}, {vr(vEXT+4*nt,4)}, {vr(e,4)}, 0")
    seen = set()
    for f, (s, nt) in enumerate(order):
        if s not in seen: A.wait(vm=tok[s], lg=rd[f]); seen.add(s)
        else: A.wait_lg(rd[f])
        d = vr(ACC+16*nt, 16)
        A(f"{MF32} {d}, {vr(WF+4*(f%4),4)}, {ar(4*s,4)}, {d}")
        if f + 4 < 240: wread(f + 4)
    stamp(A, cfg, 19)
    A(f"""v_bfe_u32 v16, {vL}, 4, 1
    v_mul_u32_u24 v16, 49152, v16
    v_and_b32 v17, 15, {vL}
    v_lshl_add_u32 v16, v17, 4, v16
    v_lshl_add_u32 v16, v18, 8, v16
    s_mul_i32 s50, {sT}, {2*49152}
    s_mul_i32 s51, {sJ}, 3072
    s_add_u32 s50, s50, s51
    s_add_u32 s50, s50, {OFF_HH}""")
    B0 = " op_sel_hi:[1,0,0]"
    for p in range(3):
        for a_ in range(2):
            g, u, t = ACC + 32*p + 8*a_, ACC + 32*p + 16 + 8*a_, 32
            for d in range(0, 8, 2): A(f"v_pk_mul_f32 {vr(t+d,2)}, {vr(g+d,2)}, {vr(g+d,2)}")
            for d in range(0, 8, 2): A(f"v_pk_fma_f32 {vr(t+d,2)}, {vr(t+d,2)}, {vr(K1,2)}, {vr(K0,2)}{B0}")
            for d in range(0, 8, 2): A(f"v_pk_mul_f32 {vr(t+d,2)}, {vr(t+d,2)}, {vr(g+d,2)}")
            for d in range(8): A(f"v_exp_f32 v{t+d}, v{t+d}")
            for d in range(0, 8, 2): A(f"v_pk_mul_f32 {vr(u+d,2)}, {vr(u+d,2)}, {vr(g+d,2)}")
            for d in range(0, 8, 2): A(f"v_pk_fma_f32 {vr(t+d,2)}, {vr(t+d,2)}, {vr(SG,2)}, {vr(SG,2)}{B0}")
            for d in range(8): A(f"v_rcp_f32 v{t+d}, v{t+d}")
            A("s_nop 0")
            for d in range(0, 8, 2): A(f"v_pk_mul_f32 {vr(u+d,2)}, {vr(u+d,2)}, {vr(t+d,2)}")
            for d in range(4): A(f"v_cvt_pk_bf16_f32 v{g+d}, v{u+2*d}, v{u+2*d+1}")
            A(f"buffer_store_dwordx4 {vr(g,4)}, v16, {WS}, s50 offen offset:{1024*p+512*a_} sc1")
    A(f"""s_lshl_b32 s50, {sT}, 7
    s_lshl_b32 s51, {sJ}, 2
    s_add_u32 s50, s50, s51
    s_add_u32 s50, s50, {OFF_FHH}""")
    set_flag(A, "s50", 17)
    stamp(A, cfg, 20)

def p5(A, cfg):
    A("s_barrier")
    RG.issue(A, T5 + 8)
    tile_addr(A)
    vec_read(A, 108, 3)
    A(f"""v_lshlrev_b32 v22, 2, v20
    s_lshr_b32 s48, {sTT}, 1
    s_lshl_b32 s50, s48, 7
    s_add_u32 s50, s50, {OFF_FHH}
    s_mul_i32 s51, {sTT}, 49152
    s_add_u32 s51, s51, {OFF_HH}""")
    poll(A, [("v22", "s50", 0)], 23, "phh")
    stamp(A, cfg, 21)
    tok = []
    for s in range(48):
        if s and s % 4 == 0: A("s_add_u32 s51, s51, 4096")
        A(f"buffer_load_dwordx4 {ar(4*s,4)}, {vL16}, {WS}, s51 offen offset:{1024*(s%4)} sc1")
        tok.append(A.vm)
    A("s_waitcnt lgkmcnt(0)")
    for d in range(10): unpack(A, 136+2*d, 137+2*d, 108+d)
    A("s_barrier")
    gemm16(A, cfg, T5, 48, tok, True)
    stamp(A, cfg, 22)
    A.nop(8)
    for d in range(0, 20, 2): A(f"v_pk_fma_f32 {vr(vX1+d,2)}, {vr(64+d,2)}, {vr(136+d,2)}, {vr(vX1+d,2)}")
    for d in range(10): A(f"v_cvt_pk_bf16_f32 v{100+d}, v{vX1+2*d}, v{vX1+2*d+1}")
    A(f"""buffer_store_dwordx4 v[100:103], v16, {OUTS}, s46 offen
    buffer_store_dwordx4 v[104:107], v16, {OUTS}, s46 offen offset:64
    buffer_store_dwordx2 v[108:109], v17, {OUTS}, s46 offen offset:128""")

SEQ = [("p1", p1), ("s1", s1), ("p2", p2), ("s2", s2), ("p3", p3), ("p4", p4), ("p5", p5)]
```

```python
import sys, os, math, struct
sys.path.insert(0, os.path.dirname(os.path.abspath(__file__)))
from asmlib import *
from layout import *

NAME = "adaLN_cond__softmax_full_mha__glu_gated_geglu__prompt"
def fbits(x): return "0x%08x" % struct.unpack("<I", struct.pack("<f", x))[0]
LOG2E = 1.4426950408889634
QSCALE = (20 ** -0.5) * LOG2E
OOB = "0x80000000"

sW, sWV, sRB, sJ, sTAG, sT = "s2", "s3", "s4", "s5", "s6", "s7"
WS, XS, OUTS, WMOD, WQKV, CS, GEN = "s[8:11]", "s[12:15]", "s[16:19]", "s[20:23]", "s[24:27]", "s[28:31]", "s[32:35]"
sROLE, sU, sLG, sWB = "s36", "s37", "s38", "s39"
sTT, sCB = "s40", "s41"
vL16, vL16b, vL16c, vTAG, vL, vST = "v1", "v2", "v3", "v4", "v5", "v6"
RING = 36 * 4096
L_RED = RING
L_STAT = RING + 512
L_MOD1 = RING + 1024
L_MOD2 = RING + 4096
L_FLAG = RING + 10240
LDS_BYTES = 163840

class Cfg:
    stop = None
    stamps = False
    dump_q = False
    force_fallback = False

def lds_addr(off):
    return [vL16, vL16b, vL16c][off >> 16], off & 0xffff

def vr(base, n): return f"v[{base}:{base+n-1}]" if n > 1 else f"v{base}"
def ar(base, n): return f"a[{base}:{base+n-1}]" if n > 1 else f"a{base}"

def stamp(A, cfg, n):
    if not cfg.stamps: return
    A(f"""s_memrealtime s[98:99]
    s_memtime s[96:97]
    s_waitcnt lgkmcnt(0)
    v_writelane_b32 {vST}, s98, {n}
    v_writelane_b32 {vST}, s96, {32+n}""")

def unpack(A, lo, hi, src):
    A(f"v_lshlrev_b32 v{lo}, 16, v{src}")
    A(f"v_and_b32 v{hi}, 0xffff0000, v{src}")

def poll(A, loads, tmpv, nm="poll"):
    L = A.label(nm); E = A.label(nm + "e")
    A("s_mov_b32 s62, 0x20000")
    A(f"{L}:")
    for k, (vo, so, imm) in enumerate(loads):
        A(f"buffer_load_dword v{tmpv+k}, {vo}, {WS}, {so} offen offset:{imm} sc1")
    A("s_sub_u32 s62, s62, 1")
    A(f"s_cbranch_scc1 {E}")
    A("s_waitcnt vmcnt(0)")
    A(f"v_cmp_ne_u32 vcc, {sTAG}, v{tmpv}")
    for k in range(1, len(loads)):
        A(f"v_cmp_ne_u32 s[60:61], {sTAG}, v{tmpv+k}")
        A("s_or_b64 vcc, vcc, s[60:61]")
    A(f"s_cbranch_vccnz {L}")
    A(f"{E}:")
    A("s_waitcnt vmcnt(0)")

def set_flag(A, soff, tmpv, imm=0):
    A(f"""v_cmp_eq_u32 vcc, 0, {vL}
    v_mov_b32 v{tmpv}, {OOB}
    s_waitcnt vmcnt(0)
    v_cndmask_b32 v{tmpv}, v{tmpv}, {vL}, vcc
    buffer_store_dword {vTAG}, v{tmpv}, {WS}, {soff} offen offset:{imm} sc1""")

def prologue(A, cfg):
    A(f"""s_cmp_ge_u32 {sW}, 256
    s_cbranch_scc1 L_end
    s_load_dwordx16 s[64:79], s[0:1], 0
    s_load_dwordx8 s[80:87], s[0:1], 64
    v_lshrrev_b32 v7, 6, v0
    v_and_b32 {vL}, 63, v0
    v_readfirstlane_b32 {sWV}, v7
    v_lshlrev_b32 {vL16}, 4, {vL}
    v_add_u32 {vL16b}, 0x10000, {vL16}
    v_add_u32 {vL16c}, 0x20000, {vL16}
    v_mov_b32 {vST}, 0
    s_and_b32 s50, {sW}, 7
    s_lshr_b32 s51, {sW}, 3
    s_lshr_b32 {sRB}, s50, 1
    s_lshl_b32 {sRB}, {sRB}, 2
    s_and_b32 s52, s51, 3
    s_add_u32 {sRB}, {sRB}, s52
    s_and_b32 {sJ}, s50, 1
    s_lshl_b32 {sJ}, {sJ}, 3
    s_lshr_b32 s52, s51, 2
    s_add_u32 {sJ}, {sJ}, s52
    s_lshl_b32 {sT}, {sRB}, 2
    s_add_u32 {sT}, {sT}, {sWV}
    s_lshl_b32 {sWB}, {sWV}, 12
    s_lshr_b32 {sCB}, {sJ}, 1
    s_and_b32 s52, {sJ}, 1
    s_lshl_b32 s52, s52, 2
    s_lshl_b32 {sTT}, {sRB}, 3
    s_add_u32 {sTT}, {sTT}, s52
    s_add_u32 {sTT}, {sTT}, {sWV}
    s_and_b32 s52, s51, 24
    s_add_u32 s52, s52, s50
    s_cmp_ge_u32 s52, 20
    s_cselect_b32 {sROLE}, 1, 0
    s_lshl_b32 {sLG}, s52, 7
    s_and_b32 s53, s51, 7
    s_lshl_b32 s54, s53, 4
    s_add_u32 {sLG}, {sLG}, s54
    s_sub_u32 s54, {sW}, 192
    s_lshl_b32 s55, s50, 3
    s_add_u32 s55, s55, s53
    s_add_u32 s55, s55, 32
    s_cmp_ge_u32 s51, 24
    s_cselect_b32 {sU}, s54, s55
    s_lshl_b32 {sU}, {sU}, 2
    s_add_u32 {sU}, {sU}, {sWV}
    s_mov_b32 s10, {WS_SIZE}
    s_mov_b32 s11, 0x20000
    s_mov_b32 s14, 2621440
    s_mov_b32 s15, 0x20000
    s_mov_b32 s18, 2621440
    s_mov_b32 s19, 0x20000
    s_mov_b32 s22, 4915200
    s_mov_b32 s23, 0x20000
    s_mov_b32 s26, 2457600
    s_mov_b32 s27, 0x20000
    s_mov_b32 s30, 1280
    s_mov_b32 s31, 0x20000
    s_mov_b32 s35, 0x20000
    v_mov_b32 v7, 0
    s_waitcnt lgkmcnt(0)
    s_mov_b64 s[8:9], s[86:87]
    s_mov_b64 s[12:13], s[64:65]
    s_mov_b64 s[16:17], s[82:83]
    s_mov_b64 s[20:21], s[80:81]
    s_mov_b64 s[24:25], s[66:67]
    s_mov_b64 s[28:29], s[78:79]
    s_mov_b64 s[32:33], s[68:69]
    s_mov_b32 s34, 819200""")
    stamp(A, cfg, 0)
    A(f"buffer_load_dword {vTAG}, v7, {WS}, 0 offen offset:{OFF_EPOCH} sc1")

def x_issue(A):
    A(f"""v_and_b32 v8, 7, v0
    v_lshrrev_b32 v9, 3, v0
    v_mul_u32_u24 v10, 1280, v8
    v_lshl_add_u32 v10, v9, 4, v10
    v_cmp_gt_u32 vcc, 128, v0
    v_mov_b32 v11, {OOB}
    s_lshl_b32 s50, {sRB}, 4
    s_add_u32 s50, s50, {sJ}
    v_cndmask_b32 v11, v11, v10, vcc
    s_mul_i32 s50, s50, {8*1280}
    buffer_load_dwordx4 v[16:19], v10, {XS}, s50 offen
    buffer_load_dwordx4 v[20:23], v10, {XS}, s50 offen offset:512
    buffer_load_dwordx4 v[24:27], v11, {XS}, s50 offen offset:1024""")

def tag_ready(A, mark):
    A.wait_vm(mark)
    A(f"""v_add_u32 {vTAG}, {TAG_INC}, {vTAG}
    s_nop 0
    v_readfirstlane_b32 {sTAG}, {vTAG}""")

def gemv_issue(A, wb, col_add):
    A(f"""s_add_u32 s50, {sLG}, {col_add}
    s_add_u32 s51, s50, {256*7680}
    s_add_u32 s52, s50, {512*7680}
    buffer_load_dwordx4 {vr(wb,4)}, v15, {WMOD}, s50 offen
    buffer_load_dwordx4 {vr(wb+4,4)}, v15, {WMOD}, s51 offen
    buffer_load_dwordx4 {vr(wb+8,4)}, v15, {WMOD}, s52 offen""")

def gemv_partial(A, wb, t, ldsoff):
    for r in range(3):
        for d in range(4):
            unpack(A, t+8, t+9, wb+4*r+d)
            if r == 0:
                A(f"v_mul_f32 v{t+2*d}, v12, v{t+8}\nv_mul_f32 v{t+2*d+1}, v12, v{t+9}")
            else:
                A(f"v_fmac_f32 v{t+2*d}, v{12+r}, v{t+8}\nv_fmac_f32 v{t+2*d+1}, v{12+r}, v{t+9}")
    A("s_nop 1")
    for i in range(4): A(f"v_permlane32_swap_b32 v{t+i}, v{t+4+i}")
    for i in range(4): A(f"v_add_f32 v{t+i}, v{t+i}, v{t+4+i}")
    A("s_nop 1")
    for i in range(2): A(f"v_permlane16_swap_b32 v{t+i}, v{t+2+i}")
    for i in range(2): A(f"v_add_f32 v{t+i}, v{t+i}, v{t+2+i}")
    for ror in (8, 4, 2, 1):
        A("s_nop 1")
        for i in range(2): A(f"v_add_f32_dpp v{t+i}, v{t+i}, v{t+i} row_ror:{ror} row_mask:0xf bank_mask:0xf")
    A(f"""v_lshrrev_b32 v{t+8}, 4, v0
    v_lshlrev_b32 v{t+8}, 3, v{t+8}
    v_add_u32 v{t+8}, {ldsoff}, v{t+8}
    ds_write_b64 v{t+8}, {vr(t,2)}""")

def gemv_publish(A, t, ldsoff, col_add):
    A(f"""v_and_b32 v{t+8}, 3, {vL}
    v_lshlrev_b32 v{t+8}, 3, v{t+8}
    v_add_u32 v{t+9}, {ldsoff}, v{t+8}
    ds_read_b64 {vr(t,2)}, v{t+9}
    ds_read_b64 {vr(t+2,2)}, v{t+9} offset:32
    ds_read_b64 {vr(t+4,2)}, v{t+9} offset:64
    ds_read_b64 {vr(t+6,2)}, v{t+9} offset:96
    s_add_u32 s50, {sLG}, {col_add}
    s_mul_hi_u32 s51, s50, {(1<<32)//1280+1}
    s_cmp_eq_u32 s51, 1
    s_cselect_b32 s52, 1.0, 0
    s_cmp_eq_u32 s51, 4
    s_cselect_b32 s52, 1.0, s52
    s_lshl_b32 s50, s50, 1
    s_add_u32 s50, s50, {OFF_MODG}
    v_cmp_gt_u32 vcc, 4, {vL}
    v_mov_b32 v{t+9}, {OOB}
    s_waitcnt lgkmcnt(0)
    v_cndmask_b32 v{t+9}, v{t+9}, v{t+8}, vcc
    v_add_f32 v{t}, v{t}, v{t+2}
    v_add_f32 v{t+1}, v{t+1}, v{t+3}
    v_add_f32 v{t+4}, v{t+4}, v{t+6}
    v_add_f32 v{t+5}, v{t+5}, v{t+7}
    v_add_f32 v{t}, v{t}, v{t+4}
    v_add_f32 v{t+1}, v{t+1}, v{t+5}
    v_cvt_pk_bf16_f32 v{t+2}, v{t}, v{t+1}""")
    unpack(A, t, t+1, t+2)
    A(f"""v_add_f32 v{t}, s52, v{t}
    v_add_f32 v{t+1}, s52, v{t+1}
    v_cvt_pk_bf16_f32 v{t}, v{t}, v{t+1}
    v_mov_b32 v{t+1}, {vTAG}
    buffer_store_dwordx2 {vr(t,2)}, v{t+9}, {WS}, s50 offen sc1""")

def stage_a(A, cfg):
    m_tag = A.vm
    LR = A.label("roleR"); LJ = A.label("joinA")
    A(f"s_cmp_eq_u32 {sROLE}, 1\ns_cbranch_scc1 {LR}")
    vm0 = A.vm
    A(f"""v_mul_u32_u24 v15, 7680, v0
    v_lshlrev_b32 v7, 1, v0
    buffer_load_ushort v12, v7, {CS}, 0 offen
    buffer_load_ushort v13, v7, {CS}, 0 offen offset:512
    buffer_load_ushort v14, v7, {CS}, 0 offen offset:1024""")
    m_c = A.vm
    gemv_issue(A, 32, 0)
    m_w = A.vm
    x_issue(A)
    tag_ready(A, m_c)
    for r in (12, 13, 14): A(f"v_lshlrev_b32 v{r}, 16, v{r}")
    for r in (12, 13, 14): A(f"v_mul_f32 v{r+40}, {fbits(-LOG2E)}, v{r}")
    for r in (12, 13, 14): A(f"v_exp_f32 v{r+40}, v{r+40}")
    A("s_nop 0")
    for r in (12, 13, 14): A(f"v_add_f32 v{r+40}, 1.0, v{r+40}")
    for r in (12, 13, 14): A(f"v_rcp_f32 v{r+40}, v{r+40}")
    A("s_nop 0")
    for r in (12, 13, 14): A(f"v_mul_f32 v{r}, v{r}, v{r+40}")
    for r in (12, 13, 14): A(f"v_cvt_pk_bf16_f32 v{r}, v{r}, v{r}")
    for r in (12, 13, 14): A(f"v_lshlrev_b32 v{r}, 16, v{r}")
    A.wait_vm(m_w)
    gemv_partial(A, 32, 44, L_RED)
    A("s_waitcnt lgkmcnt(0)\ns_barrier")
    A(f"s_cmp_lg_u32 {sWV}, 0\ns_cbranch_scc1 {LJ}")
    gemv_publish(A, 44, L_RED, 0)
    A(f"s_branch {LJ}")
    A(f"{LR}:")
    A.trace.append("s_waitcnt vmcnt(0) lgkmcnt(0)")
    LX = A.label("rskip")
    A(f"s_cmp_ge_u32 {sU}, 240\ns_cbranch_scc1 {LX}")
    A(f"""s_mul_hi_u32 s50, {sU}, {(1<<32)//6+1}
    s_mul_i32 s51, s50, 6
    s_sub_u32 s51, {sU}, s51
    s_mul_i32 s52, s50, {16*3840}
    s_mul_i32 s53, s51, 640
    s_add_u32 s52, s52, s53
    s_mul_i32 s53, {sWV}, 10240""")
    for m in range(10):
        A(f"""v_add_u32 v30, {64*m}, {vL}
        v_mul_u32_u24 v30, 1639, v30
        v_lshrrev_b32 v30, 16, v30
        v_mul_u32_u24 v30, 3200, v30
        v_add_u32 v30, v30, {vL16}""")
        if m % 4 == 0:
            if m: A("s_add_u32 s52, s52, 4096\ns_add_u32 s53, s53, 4096")
            A("s_mov_b32 m0, s53\ns_nop 0")
        A(f"buffer_load_dwordx4 v30, {WQKV}, s52 offen offset:{1024*(m%4)} lds")
    m_dma = A.vm
    x_issue(A)
    A(f"""s_mul_hi_u32 s50, {sU}, {(1<<32)//6+1}
    s_lshr_b32 s54, s51, 1
    s_and_b32 s55, s51, 1
    s_cmp_eq_u32 s54, 1
    s_cselect_b32 s56, 256, 0
    s_cselect_b32 s57, 128, 0
    s_add_u32 s58, s56, 640
    s_add_u32 s57, s57, 1792
    s_cmp_eq_u32 s54, 2
    s_cselect_b32 s56, 2304, s56
    s_cselect_b32 s57, 2816, s57
    s_cselect_b32 s58, 2816, s58
    v_mov_b32 v40, s56
    v_mov_b32 v41, s57
    v_mov_b32 v42, s58
    v_and_b32 v43, 31, {vL}
    v_lshrrev_b32 v44, 5, {vL}
    v_lshlrev_b32 v44, 9, v44
    s_mov_b32 s59, 163840""")
    for m in range(5):
        A(f"""v_add_u32 v45, {32*m}, v43
        v_mul_u32_u24 v46, 1639, v45
        v_lshrrev_b32 v46, 16, v46
        v_mul_u32_u24 v47, 40, v46
        v_sub_u32 v45, v45, v47
        v_cmp_gt_u32 vcc, 24, v45
        v_mad_u32_u24 v46, v46, s59, v44
        v_lshl_add_u32 v46, v45, 4, v46
        v_cndmask_b32 v47, v42, v41, vcc
        v_cmp_gt_u32 vcc, 16, v45
        s_nop 1
        v_cndmask_b32 v47, v47, v40, vcc
        v_add_u32 v{32+m}, v46, v47""")
    A(f"""v_lshrrev_b32 v45, 5, {vL}
    v_lshlrev_b32 v45, 3, v45
    v_bfe_u32 v46, {vL}, 2, 2
    v_add_u32 v45, v45, v46
    v_mul_u32_u24 v45, 640, v45
    v_bfe_u32 v46, {vL}, 4, 1
    v_lshl_add_u32 v45, v46, 5, v45
    v_and_b32 v46, 3, {vL}
    v_lshl_add_u32 v45, v46, 3, v45
    s_mul_i32 s53, {sWV}, 10240
    v_add_u32 v45, s53, v45
    s_mul_i32 s52, s55, {8*163840}
    s_lshl_b32 s53, s50, 12
    s_add_u32 s52, s52, s53
    s_add_u32 s52, s52, {OFF_WQF}
    s_add_u32 s53, s52, {4*163840}""")
    tag_ready(A, m_dma)
    mk = []
    for m in range(10):
        A(f"ds_read_b64_tr_b16 {vr(64+4*m,2)}, v45 offset:{64*m}")
        A(f"ds_read_b64_tr_b16 {vr(66+4*m,2)}, v45 offset:{64*m+2560}")
        mk.append(A.lg)
        if m >= 3:
            A.wait_lg(mk[m-3])
            A(f"buffer_store_dwordx4 {vr(64+4*(m-3),4)}, v{32+(m-3)%5}, {WS}, s{52+(m-3)//5} offen sc1")
    for m in range(7, 10):
        A.wait_lg(mk[m])
        A(f"buffer_store_dwordx4 {vr(64+4*m,4)}, v{32+m%5}, {WS}, s{52+m//5} offen sc1")
    A(f"""s_mul_i32 s50, s50, 3
    s_add_u32 s50, s50, s54
    s_lshl_b32 s55, s55, 7
    s_add_u32 s50, s50, s55
    s_lshl_b32 s50, s50, 2
    s_add_u32 s50, s50, {OFF_FWQ}""")
    set_flag(A, "s50", 30)
    A(f"s_branch {LJ}")
    A(f"{LX}:")
    x_issue(A)
    A("s_waitcnt vmcnt(0)")
    tag_ready(A, A.vm)
    A(f"{LJ}:")
    stamp(A, cfg, 1)

def row_reduce(A, v, t, ldsoff):
    A(f"""s_nop 1
    v_add_f32_dpp v{v}, v{v}, v{v} row_ror:8 row_mask:0xf bank_mask:0xf
    v_mov_b32 v{t}, v{v}
    s_nop 1
    v_permlane16_swap_b32 v{v}, v{t}
    v_add_f32 v{v}, v{v}, v{t}
    v_mov_b32 v{t}, v{v}
    s_nop 1
    v_permlane32_swap_b32 v{v}, v{t}
    v_add_f32 v{v}, v{v}, v{t}
    ds_write_b32 v28, v{v} offset:{ldsoff}
    s_waitcnt lgkmcnt(0)
    s_barrier
    ds_read_b128 {vr(t,4)}, v29 offset:{ldsoff}
    s_waitcnt lgkmcnt(0)
    v_add_f32 v{t}, v{t}, v{t+1}
    v_add_f32 v{t+2}, v{t+2}, v{t+3}
    v_add_f32 v{v}, v{t}, v{t+2}""")

def mod_gather(A, g0, ngran, ldsdst, t):
    nld = (ngran // 2 + 255) // 256
    last = ngran // 2 - 256 * (nld - 1)
    A(f"""v_lshlrev_b32 v{t+12}, 4, v0
    v_and_b32 v{t+13}, {last-1}, v0
    v_lshlrev_b32 v{t+14}, 3, v0
    v_lshlrev_b32 v{t+15}, 3, v{t+13}
    v_lshlrev_b32 v{t+13}, 4, v{t+13}
    v_add_u32 v{t+14}, {ldsdst}, v{t+14}
    v_add_u32 v{t+15}, {ldsdst}, v{t+15}""")
    L = A.label("mg"); E = A.label("mge")
    A("s_mov_b32 s62, 0x20000")
    for k in range(nld): A(f"s_mov_b32 s{50+k}, {OFF_MODG + g0*8 + 4096*k}")
    A(f"{L}:")
    for k in range(nld):
        A(f"buffer_load_dwordx4 {vr(t+4*k,4)}, v{t+12 if k < nld-1 else t+13}, {WS}, s{50+k} offen sc1")
    A(f"s_sub_u32 s62, s62, 1\ns_cbranch_scc1 {E}\ns_waitcnt vmcnt(0)")
    first = True
    for k in range(nld):
        for d in (1, 3):
            if first: A(f"v_cmp_ne_u32 vcc, {sTAG}, v{t+4*k+d}"); first = False
            else: A(f"v_cmp_ne_u32 s[60:61], {sTAG}, v{t+4*k+d}\ns_or_b64 vcc, vcc, s[60:61]")
    A(f"s_cbranch_vccnz {L}\n{E}:\ns_waitcnt vmcnt(0)")
    for k in range(nld):
        A(f"v_mov_b32 v{t+4*k+1}, v{t+4*k+2}")
        A(f"ds_write_b64 v{t+14 if k < nld-1 else t+15}, {vr(t+4*k,2)} offset:{2048*k}")

def stage_h(A, cfg):
    A(f"""v_lshlrev_b32 v29, 4, v8
    v_add_u32 v29, {L_STAT}, v29
    s_lshl_b32 s50, {sWV}, 2
    v_add_u32 v28, s50, v29
    s_cmp_lt_u32 {sWV}, 2
    s_cselect_b32 s56, 1.0, 0
    s_waitcnt vmcnt(0)""")
    for d in range(12): unpack(A, 64+2*d, 65+2*d, 16+d)
    A("v_add_f32 v30, v64, v65\nv_add_f32 v31, v66, v67")
    for d in range(4, 24, 2): A(f"v_add_f32 v30, v30, v{64+d}\nv_add_f32 v31, v31, v{65+d}")
    A("v_add_f32 v30, v30, v31")
    row_reduce(A, 30, 32, 0)
    A(f"v_mul_f32 v30, {fbits(1/640)}, v30\nv_mul_f32 v31, s56, v30")
    for d in range(24): A(f"v_sub_f32 v{64+d}, v{64+d}, v{30 if d < 16 else 31}")
    A("v_mul_f32 v30, v64, v64\nv_mul_f32 v31, v65, v65")
    for d in range(2, 24, 2): A(f"v_fmac_f32 v30, v{64+d}, v{64+d}\nv_fmac_f32 v31, v{65+d}, v{65+d}")
    A("v_add_f32 v30, v30, v31")
    row_reduce(A, 30, 32, 128)
    A(f"""v_mov_b32 v31, {fbits(1e-5)}
    v_fmac_f32 v31, {fbits(1/640)}, v30
    v_rsq_f32 v31, v31
    s_nop 0""")
    for d in range(24): A(f"v_mul_f32 v{64+d}, v31, v{64+d}")
    stamp(A, cfg, 2)
    mod_gather(A, 0, 640, L_MOD1, 32)
    A(f"""v_lshlrev_b32 v28, 4, v9
    v_add_u32 v28, {L_MOD1}, v28
    v_lshlrev_b32 v10, 9, v9
    v_lshl_add_u32 v10, v8, 4, v10
    v_cmp_gt_u32 vcc, 128, v0
    v_mov_b32 v11, {OOB}
    s_lshr_b32 s50, {sJ}, 2
    s_lshl_b32 s51, {sRB}, 2
    v_cndmask_b32 v11, v11, v10, vcc
    s_add_u32 s54, s50, s51
    s_mul_i32 s50, s54, 40960
    s_and_b32 s55, {sJ}, 3
    s_lshl_b32 s51, s55, 7
    s_add_u32 s50, s50, s51
    s_add_u32 s50, s50, {OFF_H}
    s_add_u32 s51, s50, {32*512}
    s_add_u32 s52, s50, {64*512}
    s_waitcnt lgkmcnt(0)
    s_barrier""")
    stamp(A, cfg, 3)
    mk = []
    for g in range(3):
        A(f"ds_read_b128 {vr(32+8*g,4)}, v28 offset:{512*g}")
        A(f"ds_read_b128 {vr(36+8*g,4)}, v28 offset:{1280+512*g}")
        mk.append(A.lg)
    for g in range(3):
        A.wait_lg(mk[g])
        for d in range(4):
            unpack(A, 56, 57, 32+8*g+d)
            unpack(A, 58, 59, 36+8*g+d)
            A(f"""v_fmac_f32 v56, v58, v{64+8*g+2*d}
            v_fmac_f32 v57, v59, v{65+8*g+2*d}
            v_cvt_pk_bf16_f32 v{16+4*g+d}, v56, v57""")
        A(f"buffer_store_dwordx4 {vr(16+4*g,4)}, v{10 if g < 2 else 11}, {WS}, s{50+g} offen sc1")
    A(f"""s_lshl_b32 s50, s54, 7
    s_lshl_b32 s55, s55, 4
    s_add_u32 s50, s50, s55
    s_lshl_b32 s55, {sWV}, 2
    s_add_u32 s50, s50, s55
    s_add_u32 s50, s50, {OFF_FH}""")
    set_flag(A, "s50", 30)
    stamp(A, cfg, 4)

def finish(A, cfg):
    L = A.label("noep")
    if cfg.stamps:
        stamp(A, cfg, 31)
        A(f"""s_lshl_b32 s50, {sW}, 2
        s_add_u32 s50, s50, {sWV}
        s_lshl_b32 s50, s50, 8
        s_add_u32 s50, s50, {OFF_DBG}
        v_lshlrev_b32 v7, 2, {vL}
        buffer_store_dword {vST}, v7, {WS}, s50 offen""")
    if cfg.stop is None:
        A(f"""s_or_b32 s50, {sW}, {sWV}
        s_cmp_lg_u32 s50, 0
        s_cbranch_scc1 {L}""")
        set_flag(A, "0", 7, OFF_EPOCH)
        A(f"{L}:")
    A("L_end:\ns_endpgm")

HEAD = f"""; fused adaLN + softmax MHA + GEGLU block, one persistent launch (generated by my gen.py)
; @launch grid=(256,1,1) block=(256,1,1) lds={LDS_BYTES}
.amdgcn_target "amdgcn-amd-amdhsa--gfx950"
.text
.globl {NAME}_kernel
.p2align 8
.type {NAME}_kernel,@function
{NAME}_kernel:
"""
TAIL = f""".section .rodata,"a"
.p2align 6
.amdhsa_kernel {NAME}_kernel
  .amdhsa_next_free_vgpr 512
  .amdhsa_next_free_sgpr 102
  .amdhsa_accum_offset 256
  .amdhsa_group_segment_fixed_size 0
  .amdhsa_kernarg_size 96
  .amdhsa_user_sgpr_count 2
  .amdhsa_user_sgpr_kernarg_segment_ptr 1
  .amdhsa_system_sgpr_workgroup_id_x 1
  .amdhsa_float_denorm_mode_32 3
.end_amdhsa_kernel
"""

def build(cfg):
    import phases
    A = Asm()
    seq = [("pro", prologue), ("a", stage_a), ("h", stage_h)] + phases.SEQ
    for nm, f in seq:
        A.c(f"==================== {nm}")
        f(A, cfg)
        if cfg.stop == nm: break
    finish(A, cfg)
    errs = check(A.trace, "kernel")
    return HEAD + A.text() + TAIL, errs

if __name__ == "__main__":
    import argparse
    ap = argparse.ArgumentParser()
    ap.add_argument("-o", default=f"cdna_kernels/{NAME}.s")
    ap.add_argument("--stop"); ap.add_argument("--stamps", action="store_true")
    ap.add_argument("--dump_q", action="store_true"); ap.add_argument("--force_fallback", action="store_true")
    a = ap.parse_args()
    cfg = Cfg(); cfg.stop = a.stop; cfg.stamps = a.stamps; cfg.dump_q = a.dump_q; cfg.force_fallback = a.force_fallback
    sys.modules["gen"] = sys.modules["__main__"]
    s, errs = build(cfg)
    open(a.o, "w").write(s)
    print(f"wrote {a.o}: {len(s)} bytes, {len(errs)} checker findings")
```

```python
import sys, os, math, struct
sys.path.insert(0, os.path.dirname(os.path.abspath(__file__)))
from asmlib import *
from layout import *

NAME = "adaLN_cond__softmax_full_mha__glu_gated_geglu__prompt"
def fbits(x): return "0x%08x" % struct.unpack("<I", struct.pack("<f", x))[0]
LOG2E = 1.4426950408889634
QSCALE = (20 ** -0.5) * LOG2E
OOB = "0x80000000"

sW, sWV, sRB, sJ, sTAG, sT = "s2", "s3", "s4", "s5", "s6", "s7"
WS, XS, OUTS, WMOD, WQKV, CS, GEN = "s[8:11]", "s[12:15]", "s[16:19]", "s[20:23]", "s[24:27]", "s[28:31]", "s[32:35]"
sROLE, sU, sLG, sWB = "s36", "s37", "s38", "s39"
sTT, sCB = "s40", "s41"
vL16, vL16b, vL16c, vTAG, vL, vST = "v1", "v2", "v3", "v4", "v5", "v6"
RING = 36 * 4096
L_RED = RING
L_STAT = RING + 512
L_MOD1 = RING + 1024
L_MOD2 = RING + 4096
L_FLAG = RING + 10240
LDS_BYTES = 163840

class Cfg:
    stop = None
    stamps = False
    dump_q = False
    force_fallback = False
    probe = None

def lds_addr(off):
    return [vL16, vL16b, vL16c][off >> 16], off & 0xffff

def vr(base, n): return f"v[{base}:{base+n-1}]" if n > 1 else f"v{base}"
def ar(base, n): return f"a[{base}:{base+n-1}]" if n > 1 else f"a{base}"

def stamp(A, cfg, n):
    if cfg.probe == n:
        A("s_memrealtime s[94:95]\ns_waitcnt lgkmcnt(0)")
    if not cfg.stamps: return
    A(f"""s_memrealtime s[98:99]
    s_memtime s[96:97]
    s_waitcnt lgkmcnt(0)
    v_writelane_b32 {vST}, s98, {n}
    v_writelane_b32 {vST}, s96, {32+n}""")

def unpack(A, lo, hi, src):
    A(f"v_lshlrev_b32 v{lo}, 16, v{src}")
    A(f"v_and_b32 v{hi}, 0xffff0000, v{src}")

def poll(A, loads, tmpv, nm="poll"):
    L = A.label(nm); E = A.label(nm + "e")
    A("s_mov_b32 s62, 0x20000")
    A(f"{L}:")
    for k, (vo, so, imm) in enumerate(loads):
        A(f"buffer_load_dword v{tmpv+k}, {vo}, {WS}, {so} offen offset:{imm} sc1")
    A("s_sub_u32 s62, s62, 1")
    A(f"s_cbranch_scc1 {E}")
    A("s_waitcnt vmcnt(0)")
    A(f"v_cmp_ne_u32 vcc, {sTAG}, v{tmpv}")
    for k in range(1, len(loads)):
        A(f"v_cmp_ne_u32 s[60:61], {sTAG}, v{tmpv+k}")
        A("s_or_b64 vcc, vcc, s[60:61]")
    A(f"s_cbranch_vccnz {L}")
    A(f"{E}:")
    A("s_waitcnt vmcnt(0)")

def set_flag(A, soff, tmpv, imm=0):
    A(f"""v_cmp_eq_u32 vcc, 0, {vL}
    v_mov_b32 v{tmpv}, {OOB}
    s_waitcnt vmcnt(0)
    v_cndmask_b32 v{tmpv}, v{tmpv}, {vL}, vcc
    buffer_store_dword {vTAG}, v{tmpv}, {WS}, {soff} offen offset:{imm} sc1""")

def prologue(A, cfg):
    A(f"""s_cmp_ge_u32 {sW}, 256
    s_cbranch_scc1 L_end
    s_load_dwordx16 s[64:79], s[0:1], 0
    s_load_dwordx8 s[80:87], s[0:1], 64
    v_lshrrev_b32 v7, 6, v0
    v_and_b32 {vL}, 63, v0
    v_readfirstlane_b32 {sWV}, v7
    v_lshlrev_b32 {vL16}, 4, {vL}
    v_add_u32 {vL16b}, 0x10000, {vL16}
    v_add_u32 {vL16c}, 0x20000, {vL16}
    v_mov_b32 {vST}, 0
    s_and_b32 s50, {sW}, 7
    s_lshr_b32 s51, {sW}, 3
    s_lshr_b32 {sRB}, s50, 1
    s_lshl_b32 {sRB}, {sRB}, 2
    s_and_b32 s52, s51, 3
    s_add_u32 {sRB}, {sRB}, s52
    s_and_b32 {sJ}, s50, 1
    s_lshl_b32 {sJ}, {sJ}, 3
    s_lshr_b32 s52, s51, 2
    s_add_u32 {sJ}, {sJ}, s52
    s_lshl_b32 {sT}, {sRB}, 2
    s_add_u32 {sT}, {sT}, {sWV}
    s_lshl_b32 {sWB}, {sWV}, 12
    s_lshr_b32 {sCB}, {sJ}, 1
    s_and_b32 s52, {sJ}, 1
    s_lshl_b32 s52, s52, 2
    s_lshl_b32 {sTT}, {sRB}, 3
    s_add_u32 {sTT}, {sTT}, s52
    s_add_u32 {sTT}, {sTT}, {sWV}
    s_and_b32 s52, s51, 24
    s_add_u32 s52, s52, s50
    s_cmp_ge_u32 s52, 20
    s_cselect_b32 {sROLE}, 1, 0
    s_lshl_b32 {sLG}, s52, 7
    s_and_b32 s53, s51, 7
    s_lshl_b32 s54, s53, 4
    s_add_u32 {sLG}, {sLG}, s54
    s_sub_u32 s54, {sW}, 192
    s_lshl_b32 s55, s50, 3
    s_add_u32 s55, s55, s53
    s_add_u32 s55, s55, 32
    s_cmp_ge_u32 s51, 24
    s_cselect_b32 {sU}, s54, s55
    s_lshl_b32 {sU}, {sU}, 2
    s_add_u32 {sU}, {sU}, {sWV}
    s_mov_b32 s10, {WS_SIZE}
    s_mov_b32 s11, 0x20000
    s_mov_b32 s14, 2621440
    s_mov_b32 s15, 0x20000
    s_mov_b32 s18, 2621440
    s_mov_b32 s19, 0x20000
    s_mov_b32 s22, 4915200
    s_mov_b32 s23, 0x20000
    s_mov_b32 s26, 2457600
    s_mov_b32 s27, 0x20000
    s_mov_b32 s30, 1280
    s_mov_b32 s31, 0x20000
    s_mov_b32 s35, 0x20000
    v_mov_b32 v7, 0
    s_waitcnt lgkmcnt(0)
    s_mov_b64 s[8:9], s[86:87]
    s_mov_b64 s[12:13], s[64:65]
    s_mov_b64 s[16:17], s[82:83]
    s_mov_b64 s[20:21], s[80:81]
    s_mov_b64 s[24:25], s[66:67]
    s_mov_b64 s[28:29], s[78:79]
    s_mov_b64 s[32:33], s[68:69]
    s_mov_b32 s34, 819200""")
    stamp(A, cfg, 0)
    A(f"buffer_load_dword {vTAG}, v7, {WS}, 0 offen offset:{OFF_EPOCH} sc1")

def x_issue(A):
    A(f"""v_and_b32 v8, 7, v0
    v_lshrrev_b32 v9, 3, v0
    v_mul_u32_u24 v10, 1280, v8
    v_lshl_add_u32 v10, v9, 4, v10
    v_cmp_gt_u32 vcc, 128, v0
    v_mov_b32 v11, {OOB}
    s_lshl_b32 s50, {sRB}, 4
    s_add_u32 s50, s50, {sJ}
    v_cndmask_b32 v11, v11, v10, vcc
    s_mul_i32 s50, s50, {8*1280}
    buffer_load_dwordx4 v[16:19], v10, {XS}, s50 offen
    buffer_load_dwordx4 v[20:23], v10, {XS}, s50 offen offset:512
    buffer_load_dwordx4 v[24:27], v11, {XS}, s50 offen offset:1024""")

def tag_ready(A, mark):
    A.wait_vm(mark)
    A(f"""v_add_u32 {vTAG}, {TAG_INC}, {vTAG}
    s_nop 0
    v_readfirstlane_b32 {sTAG}, {vTAG}""")

def gemv_issue(A, wb, col_add):
    A(f"""s_add_u32 s50, {sLG}, {col_add}
    s_add_u32 s51, s50, {256*7680}
    s_add_u32 s52, s50, {512*7680}
    buffer_load_dwordx4 {vr(wb,4)}, v15, {WMOD}, s50 offen
    buffer_load_dwordx4 {vr(wb+4,4)}, v15, {WMOD}, s51 offen
    buffer_load_dwordx4 {vr(wb+8,4)}, v15, {WMOD}, s52 offen""")

def gemv_partial(A, wb, t, ldsoff):
    for r in range(3):
        for d in range(4):
            unpack(A, t+8, t+9, wb+4*r+d)
            if r == 0:
                A(f"v_mul_f32 v{t+2*d}, v12, v{t+8}\nv_mul_f32 v{t+2*d+1}, v12, v{t+9}")
            else:
                A(f"v_fmac_f32 v{t+2*d}, v{12+r}, v{t+8}\nv_fmac_f32 v{t+2*d+1}, v{12+r}, v{t+9}")
    A("s_nop 1")
    for i in range(4): A(f"v_permlane32_swap_b32 v{t+i}, v{t+4+i}")
    for i in range(4): A(f"v_add_f32 v{t+i}, v{t+i}, v{t+4+i}")
    A("s_nop 1")
    for i in range(2): A(f"v_permlane16_swap_b32 v{t+i}, v{t+2+i}")
    for i in range(2): A(f"v_add_f32 v{t+i}, v{t+i}, v{t+2+i}")
    for ror in (8, 4, 2, 1):
        A("s_nop 1")
        for i in range(2): A(f"v_add_f32_dpp v{t+i}, v{t+i}, v{t+i} row_ror:{ror} row_mask:0xf bank_mask:0xf")
    A(f"""v_lshrrev_b32 v{t+8}, 4, v0
    v_lshlrev_b32 v{t+8}, 3, v{t+8}
    v_add_u32 v{t+8}, {ldsoff}, v{t+8}
    ds_write_b64 v{t+8}, {vr(t,2)}""")

def gemv_publish(A, t, ldsoff, col_add):
    A(f"""v_and_b32 v{t+8}, 3, {vL}
    v_lshlrev_b32 v{t+8}, 3, v{t+8}
    v_add_u32 v{t+9}, {ldsoff}, v{t+8}
    ds_read_b64 {vr(t,2)}, v{t+9}
    ds_read_b64 {vr(t+2,2)}, v{t+9} offset:32
    ds_read_b64 {vr(t+4,2)}, v{t+9} offset:64
    ds_read_b64 {vr(t+6,2)}, v{t+9} offset:96
    s_add_u32 s50, {sLG}, {col_add}
    s_mul_hi_u32 s51, s50, {(1<<32)//1280+1}
    s_cmp_eq_u32 s51, 1
    s_cselect_b32 s52, 1.0, 0
    s_cmp_eq_u32 s51, 4
    s_cselect_b32 s52, 1.0, s52
    s_lshl_b32 s50, s50, 1
    s_add_u32 s50, s50, {OFF_MODG}
    v_cmp_gt_u32 vcc, 4, {vL}
    v_mov_b32 v{t+9}, {OOB}
    s_waitcnt lgkmcnt(0)
    v_cndmask_b32 v{t+9}, v{t+9}, v{t+8}, vcc
    v_add_f32 v{t}, v{t}, v{t+2}
    v_add_f32 v{t+1}, v{t+1}, v{t+3}
    v_add_f32 v{t+4}, v{t+4}, v{t+6}
    v_add_f32 v{t+5}, v{t+5}, v{t+7}
    v_add_f32 v{t}, v{t}, v{t+4}
    v_add_f32 v{t+1}, v{t+1}, v{t+5}
    v_cvt_pk_bf16_f32 v{t+2}, v{t}, v{t+1}""")
    unpack(A, t, t+1, t+2)
    A(f"""v_add_f32 v{t}, s52, v{t}
    v_add_f32 v{t+1}, s52, v{t+1}
    v_cvt_pk_bf16_f32 v{t}, v{t}, v{t+1}
    v_mov_b32 v{t+1}, {vTAG}
    buffer_store_dwordx2 {vr(t,2)}, v{t+9}, {WS}, s50 offen sc1""")

def stage_a(A, cfg):
    m_tag = A.vm
    LR = A.label("roleR"); LJ = A.label("joinA")
    A(f"s_cmp_eq_u32 {sROLE}, 1\ns_cbranch_scc1 {LR}")
    vm0 = A.vm
    A(f"""v_mul_u32_u24 v15, 7680, v0
    v_lshlrev_b32 v7, 1, v0
    buffer_load_ushort v12, v7, {CS}, 0 offen
    buffer_load_ushort v13, v7, {CS}, 0 offen offset:512
    buffer_load_ushort v14, v7, {CS}, 0 offen offset:1024""")
    m_c = A.vm
    gemv_issue(A, 32, 0)
    m_w = A.vm
    x_issue(A)
    tag_ready(A, m_c)
    for r in (12, 13, 14): A(f"v_lshlrev_b32 v{r}, 16, v{r}")
    for r in (12, 13, 14): A(f"v_mul_f32 v{r+40}, {fbits(-LOG2E)}, v{r}")
    for r in (12, 13, 14): A(f"v_exp_f32 v{r+40}, v{r+40}")
    A("s_nop 0")
    for r in (12, 13, 14): A(f"v_add_f32 v{r+40}, 1.0, v{r+40}")
    for r in (12, 13, 14): A(f"v_rcp_f32 v{r+40}, v{r+40}")
    A("s_nop 0")
    for r in (12, 13, 14): A(f"v_mul_f32 v{r}, v{r}, v{r+40}")
    for r in (12, 13, 14): A(f"v_cvt_pk_bf16_f32 v{r}, v{r}, v{r}")
    for r in (12, 13, 14): A(f"v_lshlrev_b32 v{r}, 16, v{r}")
    A.wait_vm(m_w)
    gemv_partial(A, 32, 44, L_RED)
    A("s_waitcnt lgkmcnt(0)\ns_barrier")
    A(f"s_cmp_lg_u32 {sWV}, 0\ns_cbranch_scc1 {LJ}")
    gemv_publish(A, 44, L_RED, 0)
    A(f"s_branch {LJ}")
    A(f"{LR}:")
    A.trace.append("s_waitcnt vmcnt(0) lgkmcnt(0)")
    LX = A.label("rskip")
    A(f"s_cmp_ge_u32 {sU}, 240\ns_cbranch_scc1 {LX}")
    A(f"""s_mul_hi_u32 s50, {sU}, {(1<<32)//6+1}
    s_mul_i32 s51, s50, 6
    s_sub_u32 s51, {sU}, s51
    s_mul_i32 s52, s50, {16*3840}
    s_mul_i32 s53, s51, 640
    s_add_u32 s52, s52, s53
    s_mul_i32 s53, {sWV}, 10240""")
    for m in range(10):
        A(f"""v_add_u32 v30, {64*m}, {vL}
        v_mul_u32_u24 v30, 1639, v30
        v_lshrrev_b32 v30, 16, v30
        v_mul_u32_u24 v30, 3200, v30
        v_add_u32 v30, v30, {vL16}""")
        if m % 4 == 0:
            if m: A("s_add_u32 s52, s52, 4096\ns_add_u32 s53, s53, 4096")
            A("s_mov_b32 m0, s53\ns_nop 0")
        A(f"buffer_load_dwordx4 v30, {WQKV}, s52 offen offset:{1024*(m%4)} lds")
    m_dma = A.vm
    x_issue(A)
    A(f"""s_mul_hi_u32 s50, {sU}, {(1<<32)//6+1}
    s_lshr_b32 s54, s51, 1
    s_and_b32 s55, s51, 1
    s_cmp_eq_u32 s54, 1
    s_cselect_b32 s56, 256, 0
    s_cselect_b32 s57, 128, 0
    s_add_u32 s58, s56, 640
    s_add_u32 s57, s57, 1792
    s_cmp_eq_u32 s54, 2
    s_cselect_b32 s56, 2304, s56
    s_cselect_b32 s57, 2816, s57
    s_cselect_b32 s58, 2816, s58
    v_mov_b32 v40, s56
    v_mov_b32 v41, s57
    v_mov_b32 v42, s58
    v_and_b32 v43, 31, {vL}
    v_lshrrev_b32 v44, 5, {vL}
    v_lshlrev_b32 v44, 9, v44
    s_mov_b32 s59, 163840""")
    for m in range(5):
        A(f"""v_add_u32 v45, {32*m}, v43
        v_mul_u32_u24 v46, 1639, v45
        v_lshrrev_b32 v46, 16, v46
        v_mul_u32_u24 v47, 40, v46
        v_sub_u32 v45, v45, v47
        v_cmp_gt_u32 vcc, 24, v45
        v_mad_u32_u24 v46, v46, s59, v44
        v_lshl_add_u32 v46, v45, 4, v46
        v_cndmask_b32 v47, v42, v41, vcc
        v_cmp_gt_u32 vcc, 16, v45
        s_nop 1
        v_cndmask_b32 v47, v47, v40, vcc
        v_add_u32 v{32+m}, v46, v47""")
    A(f"""v_lshrrev_b32 v45, 5, {vL}
    v_lshlrev_b32 v45, 3, v45
    v_bfe_u32 v46, {vL}, 2, 2
    v_add_u32 v45, v45, v46
    v_mul_u32_u24 v45, 640, v45
    v_bfe_u32 v46, {vL}, 4, 1
    v_lshl_add_u32 v45, v46, 5, v45
    v_and_b32 v46, 3, {vL}
    v_lshl_add_u32 v45, v46, 3, v45
    s_mul_i32 s53, {sWV}, 10240
    v_add_u32 v45, s53, v45
    s_mul_i32 s52, s55, {8*163840}
    s_lshl_b32 s53, s50, 12
    s_add_u32 s52, s52, s53
    s_add_u32 s52, s52, {OFF_WQF}
    s_add_u32 s53, s52, {4*163840}""")
    tag_ready(A, m_dma)
    mk = []
    for m in range(10):
        A(f"ds_read_b64_tr_b16 {vr(64+4*m,2)}, v45 offset:{64*m}")
        A(f"ds_read_b64_tr_b16 {vr(66+4*m,2)}, v45 offset:{64*m+2560}")
        mk.append(A.lg)
        if m >= 3:
            A.wait_lg(mk[m-3])
            A(f"buffer_store_dwordx4 {vr(64+4*(m-3),4)}, v{32+(m-3)%5}, {WS}, s{52+(m-3)//5} offen sc1")
    for m in range(7, 10):
        A.wait_lg(mk[m])
        A(f"buffer_store_dwordx4 {vr(64+4*m,4)}, v{32+m%5}, {WS}, s{52+m//5} offen sc1")
    A(f"""s_mul_i32 s50, s50, 3
    s_add_u32 s50, s50, s54
    s_lshl_b32 s55, s55, 7
    s_add_u32 s50, s50, s55
    s_lshl_b32 s50, s50, 2
    s_add_u32 s50, s50, {OFF_FWQ}""")
    set_flag(A, "s50", 30)
    A(f"s_branch {LJ}")
    A(f"{LX}:")
    x_issue(A)
    A("s_waitcnt vmcnt(0)")
    tag_ready(A, A.vm)
    A(f"{LJ}:")
    stamp(A, cfg, 1)

def row_reduce(A, v, t, ldsoff):
    A(f"""s_nop 1
    v_add_f32_dpp v{v}, v{v}, v{v} row_ror:8 row_mask:0xf bank_mask:0xf
    v_mov_b32 v{t}, v{v}
    s_nop 1
    v_permlane16_swap_b32 v{v}, v{t}
    v_add_f32 v{v}, v{v}, v{t}
    v_mov_b32 v{t}, v{v}
    s_nop 1
    v_permlane32_swap_b32 v{v}, v{t}
    v_add_f32 v{v}, v{v}, v{t}
    ds_write_b32 v28, v{v} offset:{ldsoff}
    s_waitcnt lgkmcnt(0)
    s_barrier
    ds_read_b128 {vr(t,4)}, v29 offset:{ldsoff}
    s_waitcnt lgkmcnt(0)
    v_add_f32 v{t}, v{t}, v{t+1}
    v_add_f32 v{t+2}, v{t+2}, v{t+3}
    v_add_f32 v{v}, v{t}, v{t+2}""")

def mod_gather(A, g0, ngran, ldsdst, t):
    nld = (ngran // 2 + 255) // 256
    last = ngran // 2 - 256 * (nld - 1)
    A(f"""v_lshlrev_b32 v{t+12}, 4, v0
    v_and_b32 v{t+13}, {last-1}, v0
    v_lshlrev_b32 v{t+14}, 3, v0
    v_lshlrev_b32 v{t+15}, 3, v{t+13}
    v_lshlrev_b32 v{t+13}, 4, v{t+13}
    v_add_u32 v{t+14}, {ldsdst}, v{t+14}
    v_add_u32 v{t+15}, {ldsdst}, v{t+15}""")
    L = A.label("mg"); E = A.label("mge")
    A("s_mov_b32 s62, 0x20000")
    for k in range(nld): A(f"s_mov_b32 s{50+k}, {OFF_MODG + g0*8 + 4096*k}")
    A(f"{L}:")
    for k in range(nld):
        A(f"buffer_load_dwordx4 {vr(t+4*k,4)}, v{t+12 if k < nld-1 else t+13}, {WS}, s{50+k} offen sc1")
    A(f"s_sub_u32 s62, s62, 1\ns_cbranch_scc1 {E}\ns_waitcnt vmcnt(0)")
    first = True
    for k in range(nld):
        for d in (1, 3):
            if first: A(f"v_cmp_ne_u32 vcc, {sTAG}, v{t+4*k+d}"); first = False
            else: A(f"v_cmp_ne_u32 s[60:61], {sTAG}, v{t+4*k+d}\ns_or_b64 vcc, vcc, s[60:61]")
    A(f"s_cbranch_vccnz {L}\n{E}:\ns_waitcnt vmcnt(0)")
    for k in range(nld):
        A(f"v_mov_b32 v{t+4*k+1}, v{t+4*k+2}")
        A(f"ds_write_b64 v{t+14 if k < nld-1 else t+15}, {vr(t+4*k,2)} offset:{2048*k}")

def stage_h(A, cfg):
    A(f"""v_lshlrev_b32 v29, 4, v8
    v_add_u32 v29, {L_STAT}, v29
    s_lshl_b32 s50, {sWV}, 2
    v_add_u32 v28, s50, v29
    s_cmp_lt_u32 {sWV}, 2
    s_cselect_b32 s56, 1.0, 0
    s_waitcnt vmcnt(0)""")
    for d in range(12): unpack(A, 64+2*d, 65+2*d, 16+d)
    A("v_add_f32 v30, v64, v65\nv_add_f32 v31, v66, v67")
    for d in range(4, 24, 2): A(f"v_add_f32 v30, v30, v{64+d}\nv_add_f32 v31, v31, v{65+d}")
    A("v_add_f32 v30, v30, v31")
    row_reduce(A, 30, 32, 0)
    A(f"v_mul_f32 v30, {fbits(1/640)}, v30\nv_mul_f32 v31, s56, v30")
    for d in range(24): A(f"v_sub_f32 v{64+d}, v{64+d}, v{30 if d < 16 else 31}")
    A("v_mul_f32 v30, v64, v64\nv_mul_f32 v31, v65, v65")
    for d in range(2, 24, 2): A(f"v_fmac_f32 v30, v{64+d}, v{64+d}\nv_fmac_f32 v31, v{65+d}, v{65+d}")
    A("v_add_f32 v30, v30, v31")
    row_reduce(A, 30, 32, 128)
    A(f"""v_mov_b32 v31, {fbits(1e-5)}
    v_fmac_f32 v31, {fbits(1/640)}, v30
    v_rsq_f32 v31, v31
    s_nop 0""")
    for d in range(24): A(f"v_mul_f32 v{64+d}, v31, v{64+d}")
    stamp(A, cfg, 2)
    mod_gather(A, 0, 640, L_MOD1, 32)
    A(f"""v_lshlrev_b32 v28, 4, v9
    v_add_u32 v28, {L_MOD1}, v28
    v_lshlrev_b32 v10, 9, v9
    v_lshl_add_u32 v10, v8, 4, v10
    v_cmp_gt_u32 vcc, 128, v0
    v_mov_b32 v11, {OOB}
    s_lshr_b32 s50, {sJ}, 2
    s_lshl_b32 s51, {sRB}, 2
    v_cndmask_b32 v11, v11, v10, vcc
    s_add_u32 s54, s50, s51
    s_mul_i32 s50, s54, 40960
    s_and_b32 s55, {sJ}, 3
    s_lshl_b32 s51, s55, 7
    s_add_u32 s50, s50, s51
    s_add_u32 s50, s50, {OFF_H}
    s_add_u32 s51, s50, {32*512}
    s_add_u32 s52, s50, {64*512}
    s_waitcnt lgkmcnt(0)
    s_barrier""")
    stamp(A, cfg, 3)
    mk = []
    for g in range(3):
        A(f"ds_read_b128 {vr(32+8*g,4)}, v28 offset:{512*g}")
        A(f"ds_read_b128 {vr(36+8*g,4)}, v28 offset:{1280+512*g}")
        mk.append(A.lg)
    for g in range(3):
        A.wait_lg(mk[g])
        for d in range(4):
            unpack(A, 56, 57, 32+8*g+d)
            unpack(A, 58, 59, 36+8*g+d)
            A(f"""v_fmac_f32 v56, v58, v{64+8*g+2*d}
            v_fmac_f32 v57, v59, v{65+8*g+2*d}
            v_cvt_pk_bf16_f32 v{16+4*g+d}, v56, v57""")
        A(f"buffer_store_dwordx4 {vr(16+4*g,4)}, v{10 if g < 2 else 11}, {WS}, s{50+g} offen sc1")
    A(f"""s_lshl_b32 s50, s54, 7
    s_lshl_b32 s55, s55, 4
    s_add_u32 s50, s50, s55
    s_lshl_b32 s55, {sWV}, 2
    s_add_u32 s50, s50, s55
    s_add_u32 s50, s50, {OFF_FH}""")
    set_flag(A, "s50", 30)
    stamp(A, cfg, 4)

def finish(A, cfg):
    L = A.label("noep")
    if cfg.stamps:
        stamp(A, cfg, 31)
        A(f"""s_lshl_b32 s50, {sW}, 2
        s_add_u32 s50, s50, {sWV}
        s_lshl_b32 s50, s50, 8
        s_add_u32 s50, s50, {OFF_DBG}
        v_lshlrev_b32 v7, 2, {vL}
        buffer_store_dword {vST}, v7, {WS}, s50 offen""")
    if cfg.stop is None:
        A(f"""s_or_b32 s50, {sW}, {sWV}
        s_cmp_lg_u32 s50, 0
        s_cbranch_scc1 {L}""")
        set_flag(A, "0", 7, OFF_EPOCH)
        A(f"{L}:")
    if cfg.probe is not None:
        if cfg.probe == 31: stamp(A, cfg, 31)
        LS = A.label("spin")
        A(f"""{LS}:
        s_sleep 8
        s_memrealtime s[92:93]
        s_waitcnt lgkmcnt(0)
        s_sub_u32 s92, s92, s94
        s_cmp_lt_u32 s92, 10000
        s_cbranch_scc1 {LS}""")
    A("L_end:\ns_endpgm")

HEAD = f"""; fused adaLN + softmax MHA + GEGLU block, one persistent launch (generated by my gen.py)
; @launch grid=(256,1,1) block=(256,1,1) lds={LDS_BYTES}
.amdgcn_target "amdgcn-amd-amdhsa--gfx950"
.text
.globl {NAME}_kernel
.p2align 8
.type {NAME}_kernel,@function
{NAME}_kernel:
"""
TAIL = f""".section .rodata,"a"
.p2align 6
.amdhsa_kernel {NAME}_kernel
  .amdhsa_next_free_vgpr 512
  .amdhsa_next_free_sgpr 102
  .amdhsa_accum_offset 256
  .amdhsa_group_segment_fixed_size 0
  .amdhsa_kernarg_size 96
  .amdhsa_user_sgpr_count 2
  .amdhsa_user_sgpr_kernarg_segment_ptr 1
  .amdhsa_system_sgpr_workgroup_id_x 1
  .amdhsa_float_denorm_mode_32 3
.end_amdhsa_kernel
"""

def build(cfg):
    import phases
    A = Asm()
    seq = [("pro", prologue), ("a", stage_a), ("h", stage_h)] + phases.SEQ
    for nm, f in seq:
        A.c(f"==================== {nm}")
        f(A, cfg)
        if cfg.stop == nm: break
    finish(A, cfg)
    errs = check(A.trace, "kernel")
    return HEAD + A.text() + TAIL, errs

if __name__ == "__main__":
    import argparse
    ap = argparse.ArgumentParser()
    ap.add_argument("-o", default=f"cdna_kernels/{NAME}.s")
    ap.add_argument("--stop"); ap.add_argument("--stamps", action="store_true")
    ap.add_argument("--dump_q", action="store_true"); ap.add_argument("--force_fallback", action="store_true")
    ap.add_argument("--probe", type=int)
    a = ap.parse_args()
    cfg = Cfg(); cfg.probe = a.probe; cfg.stop = a.stop; cfg.stamps = a.stamps; cfg.dump_q = a.dump_q; cfg.force_fallback = a.force_fallback
    sys.modules["gen"] = sys.modules["__main__"]
    s, errs = build(cfg)
    open(a.o, "w").write(s)
    print(f"wrote {a.o}: {len(s)} bytes, {len(errs)} checker findings")
```

```python
import re

class Asm:
    def __init__(self):
        self.lines = []
        self.trace = []
        self.vm = 0
        self.lg = 0
        self._lab = 0
        self.rec = True
    def __call__(self, s):
        for ln in s.split("\n"):
            t = ln.split(";")[0].strip()
            if not t:
                continue
            self.lines.append(("" if t.endswith(":") else "    ") + t)
            if t.endswith(":") or t.startswith("."):
                continue
            self.trace.append(t)
            op = t.split()[0]
            if op.startswith("buffer_") or op.startswith("global_"):
                self.vm += 1
            elif op.startswith("ds_"):
                self.lg += 1
        return self
    def c(self, s):
        self.lines.append("    ; " + s)
    def label(self, base="L"):
        self._lab += 1
        return f"{base}_{self._lab}"
    def wait_vm(self, mark):
        n = self.vm - mark
        assert n >= 0
        self(f"s_waitcnt vmcnt({min(n,63)})")
    def wait_lg(self, mark):
        n = self.lg - mark
        assert n >= 0
        self(f"s_waitcnt lgkmcnt({min(n,15)})")
    def wait(self, vm=None, lg=None):
        p = []
        if vm is not None: p.append(f"vmcnt({min(self.vm-vm,63)})")
        if lg is not None: p.append(f"lgkmcnt({min(self.lg-lg,15)})")
        self("s_waitcnt " + " ".join(p))
    def nop(self, n):
        while n > 0:
            k = min(n, 16); self(f"s_nop {k-1}"); n -= k
    def loop_begin(self): return len(self.trace)
    def loop_end(self, start, times=1):
        body = self.trace[start:]
        for _ in range(times): self.trace += body
    def side_begin(self): return (len(self.trace), self.vm, self.lg)
    def side_end(self, st):
        self.sides = getattr(self, "sides", []) + [self.trace[max(0, st[0]-40):]]
        del self.trace[st[0]:]; self.vm = st[1]; self.lg = st[2]
    def fence(self):
        self.trace.append("#fence")
    def text(self): return "\n".join(self.lines) + "\n"

_reg = re.compile(r"^(-|\|)?(abs\()?([vas])(\d+|\[(\d+):(\d+)\])\)?\|?$")
def regs(tok):
    tok = tok.strip()
    if tok in ("vcc",): return [("s", "vcc")]
    if tok in ("vcc_lo", "vcc_hi"): return [("s", "vcc")]
    if tok in ("exec", "exec_lo", "exec_hi"): return [("s", "exec")]
    if tok == "m0": return [("s", "m0")]
    m = _reg.match(tok)
    if not m: return []
    k = m.group(3)
    if m.group(5) is not None:
        return [(k, i) for i in range(int(m.group(5)), int(m.group(6)) + 1)]
    return [(k, int(m.group(4)))]

TRANS = ("v_exp_", "v_log_", "v_rcp_", "v_rsq_", "v_sqrt_", "v_sin_", "v_cos_")
def passes(op):
    if "32x32x4" in op: return 16
    if "32x32" in op: return 8
    if "16x16" in op: return 4
    raise ValueError(op)

class I:
    pass
def parse(t):
    o = I(); o.t = t
    sp = t.split(None, 1); o.op = op = sp[0]
    rest = sp[1] if len(sp) > 1 else ""
    ops = [x.strip() for x in re.split(r",(?![^\[]*\])", rest)] if rest else []
    mods = ""
    if ops:
        l = ops[-1].split(None, 1)
        if len(l) > 1: ops[-1] = l[0]; mods = l[1]
    o.ops = ops; o.mods = mods
    o.kind = "other"; o.w = []; o.r = []
    R = lambda xs: [r for x in xs for r in regs(x)]
    if op.startswith("v_mfma"):
        o.kind = "mfma"; o.D = regs(ops[0]); o.A = regs(ops[1]); o.B = regs(ops[2]); o.C = regs(ops[3])
        o.w = o.D; o.r = o.A + o.B + o.C; o.p = passes(op)
    elif op.startswith("v_"):
        o.kind = "valu"
        o.trans = op.startswith(TRANS)
        o.dpp = ("_dpp" in op) or ("row_" in mods) or ("quad_perm" in mods)
        o.perm = op.startswith("v_permlane")
        o.rl = op.startswith("v_readlane") or op.startswith("v_readfirstlane")
        o.dl = op.startswith("v_dot")
        if o.perm: o.w = R(ops[:2]); o.r = R(ops[:2])
        elif op.startswith(("v_add_co", "v_sub_co", "v_addc_co", "v_subb_co", "v_mad_u64", "v_div_scale")):
            o.w = R(ops[:2]); o.r = R(ops[2:])
        else:
            o.w = R(ops[:1]); o.r = R(ops[1:])
            if op.startswith(("v_fmac", "v_dot2c", "v_writelane", "v_pk_fmac")) or "UNUSED_PRESERVE" in mods or o.dpp:
                o.r = o.r + o.w
        if op == "v_nop": o.w = []; o.r = []
    elif op.startswith("ds_"):
        o.kind = "ds"
        if op.startswith(("ds_read", "ds_bpermute", "ds_permute", "ds_swizzle")): o.w = R(ops[:1]); o.r = R(ops[1:])
        else: o.r = R(ops)
    elif op.startswith(("buffer_", "global_")):
        o.kind = "vm"; o.lds = " lds" in (" " + mods) or "_lds_" in op
        o.store = "store" in op or "atomic" in op
        o.data = []
        if op.startswith(("buffer_wbl2", "buffer_inv")): pass
        elif o.lds: o.r = R(ops) + [("s", "m0")]
        elif op.startswith("buffer_"):
            if o.store:
                o.r = R(ops); o.data = regs(ops[0])
                if "atomic" in op and "sc0" in mods: o.w = regs(ops[0])
            else: o.w = regs(ops[0]); o.r = R(ops[1:])
        else:
            if o.store: o.r = R(ops); o.data = regs(ops[1])
            else: o.w = regs(ops[0]); o.r = R(ops[1:])
    elif op.startswith("s_"):
        o.kind = "salu"
        if op.startswith(("s_cmp", "s_waitcnt", "s_barrier", "s_branch", "s_cbranch", "s_nop", "s_endpgm", "s_setprio", "s_sleep", "s_bitcmp")):
            o.r = R(ops)
            if "vcc" in op: o.r += [("s", "vcc")]
        elif op.startswith(("s_load", "s_memtime", "s_memrealtime", "s_buffer_load")):
            o.kind = "smem"; o.w = R(ops[:1]); o.r = R(ops[1:])
        else:
            o.w = R(ops[:1]); o.r = R(ops[1:])
            if "saveexec" in op: o.w += [("s", "exec")]
    return o

def check(trace, name="", verbose=True):
    errs = []
    hist = []
    pos = 0
    vmq = []; lgq = []; smem = []
    def err(i, p, need, have, why):
        errs.append(f"[{name}] {why}: need {need} have {have}\n      prod: {p.t}\n      cons: {i.t}")
    for idx, t in enumerate(trace):
        if t == "#fence":
            continue
        i = parse(t)
        if i.op == "s_waitcnt":
            m = re.search(r"vmcnt\((\d+)\)", t)
            if m:
                n = int(m.group(1)); vmq = vmq[len(vmq)-n:] if n < len(vmq) and n > 0 else ([] if n == 0 else vmq)
            m = re.search(r"lgkmcnt\((\d+)\)", t)
            if m:
                n = int(m.group(1))
                if n == 0: lgq = []; smem = []
                else:
                    if smem: errs.append(f"[{name}] counted lgkmcnt with smem outstanding: {t}")
                    if n < len(lgq): lgq = lgq[len(lgq)-n:]
        rs = set(i.r); ws = set(i.w); touch = rs | ws
        for q, nm in ((vmq, "vmcnt"), (lgq, "lgkmcnt"), (smem, "smem")):
            for p in q:
                if set(p.w) & touch:
                    errs.append(f"[{name}] touches pending {nm} result\n      prod: {p.t}\n      cons: {i.t}")
        for (pp, p) in hist:
            d = pos - pp - 1
            pw = set(p.w)
            if p.kind == "valu":
                vw = {r for r in pw if r[0] != "s"}; sw = {r for r in pw if r[0] == "s"}
                if i.kind == "mfma" and vw & rs and d < 2: err(i, p, 2, d, "VALU->MFMA")
                if i.kind == "valu":
                    if p.trans and not i.trans and vw & rs and d < 1: err(i, p, 1, d, "trans->VALU")
                    if (i.perm or i.dpp) and vw & rs and d < 2: err(i, p, 2, d, "VALU->permlane/DPP")
                    if i.rl and vw & rs and d < 1: err(i, p, 1, d, "VALU->readlane")
                    if sw & rs and d < 2: err(i, p, 2, d, "VALU sgpr->VALU const")
                    if ("s","vcc") in sw and i.op.startswith("v_cndmask") and "vcc" in i.t and d < 2: err(i, p, 2, d, "vcc->cndmask")
                    if p.dl and vw & touch and d < 3 and not (i.op == p.op and not (vw & set(regs(i.ops[1]) + regs(i.ops[2])))): err(i, p, 3, d, "DL op result")
                    if ("sdwa" in p.op or "op_sel" in p.mods) and not p.op.startswith("v_pk") and vw & touch and d < 1: err(i, p, 1, d, "opsel/sdwa")
                if i.kind == "vm" and sw & rs and d < 5: err(i, p, 5, d, "VALU sgpr->VMEM")
                if i.kind in ("salu",) and sw & rs and d < 1 and p.rl: err(i, p, 1, d, "readlane sgpr->SALU (pad)")
            elif p.kind == "mfma":
                D = set(p.D)
                far = {2: 5, 4: 8, 8: 12, 16: 20}[p.p]
                if i.kind == "mfma":
                    if D & set(i.A + i.B) and d < far: err(i, p, far, d, "MFMA D->MFMA A/B")
                    if D & set(i.C):
                        if i.C == p.D and i.p == p.p: pass
                        elif d < p.p + 2: err(i, p, p.p + 2, d, "MFMA D->MFMA C overlap")
                    elif D & set(i.D) and d < p.p + 2: err(i, p, p.p + 2, d, "MFMA D->MFMA D WAW")
                elif i.kind in ("valu", "vm", "ds"):
                    if D & touch and d < far: err(i, p, far, d, "MFMA D->VALU/mem")
                if i.kind in ("valu",) and set(p.C) & ws and d < p.p - 1: err(i, p, p.p - 1, d, "MFMA C WAR")
            elif p.kind == "salu":
                if ("s", "m0") in pw and i.kind == "vm" and i.lds and d < 1: err(i, p, 1, d, "m0->DMA")
            elif p.kind == "vm":
                if p.store and len(p.data) >= 3 and set(p.data) & ws:
                    need = 2 if i.kind in ("valu", "mfma") else 1
                    if d < need: err(i, p, need, d, "store data WAR")
        if i.kind == "vm": vmq.append(i)
        elif i.kind == "ds": lgq.append(i)
        elif i.kind == "smem": smem.append(i)
        hist.append((pos, i))
        step = 1
        if i.op == "s_nop": step = int(i.ops[0], 0) + 1
        pos += step
        hist = [(pp, p) for (pp, p) in hist if pos - pp <= 24]
    seen = []
    for e in errs:
        if e not in seen: seen.append(e)
    if verbose:
        for e in seen[:40]: print(e)
    return seen
```

```python
OFF_EPOCH = 0
OFF_FM   = 0x1000
OFF_FWQ  = 0x5000
OFF_FH   = 0x9000
OFF_FKV  = 0xD000
OFF_FO   = 0xF000
OFF_FX1  = 0x13000
OFF_FHH  = 0x17000
OFF_FWO  = 0x1F000
OFF_FWD  = 0x1F400
OFF_FWG  = 0x1FC00
OFF_MODG = 0x21000
OFF_CSB  = 0x28000
OFF_ST   = 0x60000
OFF_WQF  = 0x100000
OFF_WOF  = 0x380000
OFF_WDF  = 0x480000
OFF_WGUF = 0x680000
OFF_H    = 0xA80000
OFF_KV   = 0xD00000
OFF_O    = 0x1280000
OFF_X1S  = 0x1500000
OFF_HH   = 0x1780000
OFF_DBG  = 0x1E00000
WS_SIZE  = 0x2000000
KVB = 2688
KV_R = 1024; KV_V0 = 1280; KV_V1 = 1936
TAG_INC = 0x9E3779B9

def wgu_order():
    return [(s, nt) for s in range(40) for nt in range(4)] + [(s, nt) for s in range(40) for nt in (4, 5)]
def wq_order():
    return [(s, t) for s in range(40) for t in range(3)] + [(s, 3) for s in range(40)]
def hh_pos(s):
    return 2 * (s // 3) + s % 3 if s % 3 < 2 else 32 + s // 3
```

```python
from gen import *

MF32 = "v_mfma_f32_32x32x16_bf16"
MF16 = "v_mfma_f32_16x16x32_bf16"
MF2B = "v_mfma_f32_32x32x4bf16_1k"
L_STG = 16384
L_VT = 49152
L_Q = 49152 + 10240
L_K0 = L_Q + 10240
L_MRG = 7 * 16384

class Sched:
    def __init__(self, A, every=2):
        self.A = A; self.vq = []; self.q = []; self.every = every; self.last = -99; self.marks = {}; self.bar = 0
    def vm(self, key, fn, after=0, start=0): self.vq.append((key, fn, after, start))
    def op(self, text_or_fn, cost=4, start=0): self.q.append((text_or_fn, cost, start))
    def ops(self, text, start=0):
        for ln in text.split("\n"):
            ln = ln.strip()
            if ln: self.op(ln, 8 if ln.startswith(("v_exp", "v_rcp", "v_rsq")) else 14 if ln.startswith("buffer") else 4, start)
    def pop_vm(self):
        key, fn, after, start = self.vq.pop(0)
        assert after <= self.bar, (key, after, self.bar)
        fn(); self.marks[key] = self.A.vm
    def need(self, key):
        while key not in self.marks: self.pop_vm()
        return self.marks[key]
    def gap(self, g, budget):
        if self.vq and g - self.last >= self.every and self.vq[0][2] <= self.bar and self.vq[0][3] <= g:
            self.pop_vm(); self.last = max(self.last + self.every, g - 0.5); budget -= 16
        while self.q and self.q[0][2] <= g and self.q[0][1] <= budget:
            t, c, _ = self.q.pop(0); budget -= c
            if callable(t): t()
            else: self.A(t)
    def flush(self):
        while self.vq: self.pop_vm()
        while self.q:
            t, c, _ = self.q.pop(0)
            if callable(t): t()
            else: self.A(t)

def dma_items(S, A, n, slot, sreg, va_of, after=0):
    def mk(t):
        def f():
            if t == 0: A(f"s_add_u32 m0, {sWB}, {slot * 16384}\ns_add_u32 {sreg}, {sreg}, 16384")
            A(f"buffer_load_dwordx4 {va_of(t)}, {WS}, {sreg} offen offset:{1024*t} sc1 lds")
        return f
    for t in range(4): S.vm(("w", n, t), mk(t), after)
def tok_item(S, A, s, sreg, areg=None):
    def f():
        if s % 4 == 0: A(f"s_add_u32 {sreg}, {sreg}, 4096")
        A(f"buffer_load_dwordx4 {ar(4*s if areg is None else areg,4)}, {vL16}, {WS}, {sreg} offen offset:{1024*(s%4)} sc1")
    S.vm(("t", s), f)

vSD = 224
vG2 = 232
sSD, sSL = "s88", "s89"
sSA, sSB, sSC, sSF = "s90", "s91", "s92", "s93"

def side_setup(A):
    LD = A.label("ssD"); LJ = A.label("ssJ")
    A(f"""s_lshl_b32 {sSL}, {sWV}, 13
    s_add_u32 {sSL}, {sSL}, {L_STG}
    s_cmp_ge_u32 {sW}, 120
    s_cbranch_scc1 {LD}
    s_mul_hi_u32 s56, {sW}, {(1<<32)//5+1}
    s_mul_i32 s55, s56, 5
    s_sub_u32 s55, {sW}, s55
    s_lshr_b32 s54, {sWV}, 1
    s_and_b32 s53, {sWV}, 1
    s_cmp_eq_u32 s54, 1
    s_cselect_b32 s32, s74, s72
    s_cselect_b32 s33, s75, s73
    s_mov_b32 s34, 1966080
    s_lshl_b32 s57, s55, 1
    s_add_u32 s57, s57, s53
    s_mul_i32 {sSD}, s57, {64*3072}
    s_lshl_b32 s57, s56, 7
    s_add_u32 {sSD}, {sSD}, s57
    v_lshrrev_b32 v30, 3, {vL}
    v_and_b32 v31, 7, {vL}
    v_bfe_u32 v29, {vL}, 4, 1
    v_lshlrev_b32 v29, 2, v29
    v_xor_b32 v31, v31, v29
    v_mul_u32_u24 v30, 3072, v30
    v_lshl_add_u32 v{vSD}, v31, 4, v30""")
    for m in range(1, 8): A(f"v_add_u32 v{vSD+m}, {24576*m - 1024*(m%4)}, v{vSD}")
    A(f"""s_lshl_b32 s57, s56, 1
    s_add_u32 s57, s57, s53
    s_mul_hi_u32 s58, s57, {(1<<32)//3+1}
    s_mul_i32 s59, s58, 3
    s_sub_u32 s57, s57, s59
    s_lshl_b32 s59, s57, 1
    s_add_u32 s59, s59, s54
    s_mul_i32 {sSF}, s59, 5
    s_add_u32 {sSF}, {sSF}, s55
    s_lshl_b32 s63, s58, 5
    s_add_u32 {sSF}, {sSF}, s63
    s_lshl_b32 {sSF}, {sSF}, 2
    s_add_u32 {sSF}, {sSF}, {OFF_FWG}
    s_mul_i32 {sSC}, s58, 6
    s_add_u32 {sSC}, {sSC}, s59
    s_lshl_b32 {sSC}, {sSC}, 11
    s_cmp_ge_u32 s55, 3
    s_cselect_b32 s63, 1, 0
    s_add_u32 s63, s63, s55
    s_lshl_b32 s63, s63, 3
    s_add_u32 {sSC}, {sSC}, s63
    s_add_u32 {sSC}, {sSC}, {OFF_CSB}
    s_mul_i32 s58, s58, 245760
    s_lshl_b32 s59, s57, 11
    s_cmp_eq_u32 s57, 2
    s_cselect_b32 s59, {160*1024}, s59
    s_cselect_b32 {sSB}, 2, 4
    s_lshl_b32 {sSB}, {sSB}, 10
    s_add_u32 s58, s58, s59
    s_lshl_b32 s59, s54, 10
    s_add_u32 s58, s58, s59
    s_lshl_b32 s59, s55, 3
    s_mul_i32 s59, s59, {sSB}
    s_add_u32 s58, s58, s59
    s_add_u32 {sSA}, s58, {OFF_WGUF}
    s_branch {LJ}
    {LD}:
    s_cmp_ge_u32 {sW}, 216
    s_cselect_b32 s32, s68, s76
    s_cselect_b32 s33, s69, s77
    s_cselect_b32 s54, 96, 0
    s_cselect_b32 s57, 20, 48
    s_mov_b32 s58, {OFF_WDF}
    s_cselect_b32 s58, {OFF_WOF}, s58
    s_mov_b32 s59, {OFF_FWD}
    s_cselect_b32 s59, {OFF_FWO}, s59
    s_cselect_b32 s63, 7, 8
    s_mul_i32 s34, s57, {32*1280}
    s_sub_u32 s54, {sW}, s54
    s_sub_u32 s54, s54, 120
    s_and_b32 s55, s54, 1
    s_lshr_b32 s54, s54, 1
    s_lshl_b32 s56, s54, 2
    s_add_u32 s56, s56, {sWV}
    s_mul_i32 {sSD}, s56, {8*1280}
    s_mul_i32 s56, s55, 640
    s_add_u32 {sSD}, {sSD}, s56
    s_lshl_b32 s55, s55, 2
    s_add_u32 s55, s55, {sWV}
    s_lshl_b32 {sSF}, s55, s63
    s_add_u32 {sSF}, {sSF}, s59
    s_lshl_b32 s56, s54, 2
    s_add_u32 {sSF}, {sSF}, s56
    s_mul_hi_u32 s56, s54, {(1<<32)//3+1}
    s_mul_i32 s59, s56, 3
    s_sub_u32 s59, s54, s59
    s_sub_u32 s63, s54, s56
    s_add_u32 s56, s56, 32
    s_cmp_eq_u32 s59, 2
    s_cselect_b32 s63, s56, s63
    s_cmp_eq_u32 s57, 20
    s_cselect_b32 s63, s54, s63
    s_mul_i32 s55, s55, s57
    s_add_u32 s55, s55, s63
    s_mul_i32 s55, s55, 5120
    s_add_u32 {sSA}, s55, s58""")
    for m in range(5):
        A(f"""v_add_u32 v30, {64*m}, {vL}
        v_mul_u32_u24 v30, 1639, v30
        v_lshrrev_b32 v30, 16, v30
        v_mul_u32_u24 v30, 640, v30
        v_add_u32 v{vSD+m}, v30, {vL16}""")
    A(f"v_add_u32 v{vSD+4}, 0x1000, v{vSD+4}")
    for m in range(5, 8): A(f"v_mov_b32 v{vSD+m}, {OOB}")
    A(f"{LJ}:")

def side_process(A):
    LD = A.label("spD"); LJ = A.label("spJ")
    F = 192
    A(f"s_cmp_ge_u32 {sW}, 120\ns_cbranch_scc1 {LD}")
    A(f"""v_lshrrev_b32 v28, 5, {vL}
    v_lshlrev_b32 v29, 3, v28
    v_bfe_u32 v30, {vL}, 2, 2
    v_add_u32 v29, v29, v30
    v_lshlrev_b32 v29, 7, v29
    v_bfe_u32 v30, {vL}, 4, 1
    v_lshl_add_u32 v29, v30, 5, v29
    v_and_b32 v31, 1, {vL}
    v_lshl_add_u32 v29, v31, 4, v29
    v_bfe_u32 v30, {vL}, 1, 1
    v_lshl_add_u32 v29, v30, 3, v29
    v_bfe_u32 v30, {vL}, 3, 1
    s_and_b32 s53, {sWV}, 1
    v_xor_b32 v30, s53, v30
    v_lshl_add_u32 v29, v30, 6, v29
    s_and_b32 s54, {sSL}, {~8192 & 0xffffffff}
    v_add_u32 v29, s54, v29
    v_mul_u32_u24 v31, 1280, v31
    v_lshlrev_b32 v30, 4, v28
    v_sub_u32 v30, v30, v31
    s_mul_hi_u32 s56, {sW}, {(1<<32)//5+1}
    s_mul_i32 s55, s56, 5
    s_sub_u32 s55, {sW}, s55
    s_lshl_b32 s55, s55, 8
    s_add_u32 s55, s55, {L_MOD2 + 2560}
    v_add_u32 v30, s55, v30""")
    mk = []
    def fin(f):
        A.wait_lg(mk[f])
        A(f"{MF32} v[32:47], {vr(96+4*f,4)}, {vr(F+4*f,4)}, {'v[32:47]' if f else '0'}")
        A(f"buffer_store_dwordx4 {vr(F+4*f,4)}, {vL16}, {WS}, {sSA} offen sc1\ns_add_u32 {sSA}, {sSA}, {sSB}")
    for f in range(8):
        for r_ in range(2): A(f"ds_read_b64_tr_b16 {vr(F+4*f+2*r_,2)}, v29 offset:{(16*f+4*r_)*128}")
        A(f"ds_read_b128 {vr(96+4*f,4)}, v30 offset:{32*f}")
        mk.append(A.lg)
        if f >= 3: fin(f - 3)
    for f in range(5, 8): fin(f)
    A(f"""v_cmp_eq_u32 vcc, 0, v28
    v_lshlrev_b32 v29, 6, {vL}
    v_mov_b32 v30, {OOB}
    v_cndmask_b32 v29, v30, v29, vcc""")
    A.nop(6)
    A(f"buffer_store_dwordx2 v[32:33], v29, {WS}, {sSC} offen sc1\ns_branch {LJ}")
    A(f"{LD}:"); newpath(A)
    A(f"""v_lshrrev_b32 v28, 4, {vL}
    v_lshlrev_b32 v28, 13, v28
    v_bfe_u32 v29, {vL}, 2, 2
    v_mul_u32_u24 v29, 640, v29
    s_mul_i32 s54, {sWV}, 160
    s_add_u32 s54, s54, {L_STG}
    v_add3_u32 v28, v28, v29, s54
    v_and_b32 v30, 3, {vL}
    v_lshl_add_u32 v29, v30, 3, v28
    v_lshl_add_u32 v28, v30, 4, v28
    s_add_u32 s54, {sSA}, 4096""")
    mk = []
    for nt in range(5):
        for r_ in range(2):
            im = r_*2560 + ((nt >> 1)*64 + (nt & 1)*8 if nt < 4 else 128)
            A(f"ds_read_b64_tr_b16 {vr(F+4*nt+2*r_,2)}, v{28 if nt < 4 else 29} offset:{im}")
        mk.append(A.lg)
    for nt in range(5):
        A.wait_lg(mk[nt])
        if nt < 4: A(f"buffer_store_dwordx4 {vr(F+4*nt,4)}, {vL16}, {WS}, {sSA} offen offset:{1024*nt} sc1")
        else: A(f"buffer_store_dwordx4 {vr(F+4*nt,4)}, {vL16}, {WS}, s54 offen sc1")
    A(f"{LJ}:")

def p1(A, cfg):
    WF, ACC = 32, 64
    exec_lanes(A, 30); apoll_issue(A, "s48", 50); A("s_mov_b64 exec, -1")
    S = Sched(A)
    A(f"""v_and_b32 v18, 31, {vL}
    v_cmp_gt_u32 s[58:59], 24, v18
    v_mov_b32 v19, {OOB}
    s_mul_i32 s42, {sJ}, 163840
    s_add_u32 s42, s42, {sWB}
    v_cndmask_b32 v19, v19, {vL16}, s[58:59]
    s_add_u32 s42, s42, {OFF_WQF - 16384}""")
    for c in range(3):
        ws_ = [w for w in range(4) if (c + w) % 3 == 2]
        A(f"s_cmp_eq_u32 {sWV}, {ws_[0]}\ns_cselect_b64 s[58:59], -1, 0")
        if len(ws_) > 1: A(f"s_cmp_eq_u32 {sWV}, {ws_[1]}\ns_cselect_b64 s[58:59], -1, s[58:59]")
        A(f"v_cndmask_b32 v{12+c}, {vL16}, v19, s[58:59]")
    A(f"s_cmp_lt_u32 {sWV}, 2\ns_cselect_b64 s[58:59], -1, 0")
    for c in range(3): A(f"v_cndmask_b32 v{60+c}, {vL16}, v{12+c}, s[58:59]")
    def va(n):
        return lambda t: (f"v{12 + (n + t) % 3}" if n < 7 else f"v{60 + (n + t) % 3}" if n == 7 else vL16)
    PRE = cfg.p1_pre
    for n in range(PRE): dma_items(S, A, n, n, "s42", va(n))
    LJ = A.label("wqjoin")
    set_flag(A, "s49")
    exec_lanes(A, 30)
    A(f"v_cmp_ne_u32 vcc, {sTAG}, v50\ns_mov_b64 exec, -1\ns_cbranch_vccz {LJ}")
    st = A.side_begin(); apoll(A, "s48", 30, 50, "pwq"); A.side_end(st)
    A(f"{LJ}:\ns_barrier")
    stamp(A, cfg, 4)
    S.flush()
    side_setup(A)
    nld2 = gather_setup(A, 1280, L_MOD2, vG2)
    LN = A.label("nog2")
    A(f"s_cmp_lg_u32 {sROLE}, 1\ns_cbranch_scc1 {LN}")
    gemv_silu(A, 10)
    gemv_partial(A, 4)
    A(f"s_cmp_lg_u32 {sWV}, 0\ns_cbranch_scc1 {LN}")
    gemv_publish(A, 4)
    A(f"{LN}:")
    A(f"""s_lshl_b32 s50, {sT}, 8
    s_add_u32 s50, s50, {OFF_FH}
    s_mul_i32 s43, {sT}, 40960
    s_add_u32 s43, s43, {OFF_H - 4096}""")
    stamp(A, cfg, 5)
    apoll(A, "s50", 16, 20, "ph")
    stamp(A, cfg, 6)
    s = 40 - 5 * (8 - PRE)
    for s_ in range(s): tok_item(S, A, s_, "s43")
    for n in range(PRE, 9):
        dma_items(S, A, n, n, "s42", va(n))
        for _ in range(5):
            if s < 40: tok_item(S, A, s, "s43"); s += 1
    dma_items(S, A, 9, 0, "s42", va(9), after=2)
    for m in range(8):
        def f(m=m):
            if m % 4 == 0: A(f"s_add_u32 m0, {sSL}, {1024*m}\ns_nop 0")
            A(f"buffer_load_dwordx4 v{vSD+m}, {GEN}, {sSD} offen offset:{1024*(m%4)} lds")
        S.vm(("s", m), f, after=4)
    for k in range(nld2): S.vm(("g", k), lambda k=k: gather_load(A, 640, nld2, k, vG2))
    for _ in range(cfg.p1_up): S.pop_vm()
    A("s_barrier")
    order = wq_order()
    rd = {}
    def wread(f):
        if f % 16 == 0 and f:
            m = f // 16
            if m >= PRE: A.wait_vm(S.need(("w", m, 3)))
            if m in (2, 4, 6) or m >= PRE: A("s_barrier"); S.bar = m
        va_, im = lds_addr((f % 144) * 1024)
        A(f"ds_read_b128 {vr(WF+4*(f%4),4)}, {va_} offset:{im}")
        rd[f] = A.lg
    for f in range(4): wread(f)
    S.ops(f"""v_lshrrev_b32 v16, 5, {vL}
    v_and_b32 v17, 31, {vL}
    s_lshl_b32 s50, {sJ}, 7
    s_add_u32 s50, s50, {sT}
    s_mul_i32 s50, s50, {KVB}
    s_add_u32 s50, s50, {OFF_KV}
    s_add_u32 s51, s50, {64*KVB}
    s_mov_b32 s52, {64*KVB}
    s_mov_b32 s53, {fbits(QSCALE)}
    v_lshlrev_b32 v18, 3, v17
    v_mad_u32_u24 v20, v16, s52, v18
    s_lshl_b32 s54, {sWV}, 8
    s_add_u32 s54, s54, {L_Q + 8192}
    v_lshl_add_u32 v21, v16, 10, v18
    v_add_u32 v21, s54, v21
    s_lshl_b32 s54, {sWV}, 10
    s_add_u32 s54, s54, {L_Q}
    v_add_u32 v22, s54, {vL16}
    s_cmp_eq_u32 {sWV}, 0
    s_cselect_b32 s54, 0, 3072
    s_add_u32 s54, s54, {L_K0}
    v_add_u32 v19, s54, {vL16}
    s_mul_i32 s54, {sWV}, 2560
    s_add_u32 s54, s54, {L_VT}
    v_mul_u32_u24 v23, 80, v17
    v_lshl_add_u32 v23, v16, 3, v23
    v_add_u32 v23, s54, v23
    v_bfe_u32 v24, {vL}, 2, 2
    v_lshl_add_u32 v24, v16, 2, v24
    v_mul_u32_u24 v24, 80, v24
    v_add_u32 v24, s54, v24
    v_and_b32 v25, 1, {vL}
    v_lshlrev_b32 v25, 4, v25
    v_bfe_u32 v26, {vL}, 1, 1
    v_lshl_add_u32 v25, v26, 3, v25
    v_cmp_gt_u32 vcc, 16, v17
    v_add_u32 v26, 48, v25
    v_mul_u32_u24 v27, 320, v16
    v_cndmask_b32 v25, 32, v25, vcc
    v_cndmask_b32 v26, 40, v26, vcc
    v_add_u32 v25, v25, v24
    v_add_u32 v26, v26, v24
    v_lshl_add_u32 v27, v17, 4, v27
    v_add_u32 v28, 20, v16
    v_cmp_lt_u32 vcc, v17, v28
    v_mov_b32 v28, {OOB}
    v_mov_b32 v29, 0x3f803f80
    v_cndmask_b32 v27, v28, v27, vcc
    v_cmp_gt_u32 vcc, 20, v17
    s_lshl_b32 s55, {sJ}, 7
    s_add_u32 s55, s55, {sT}
    s_and_b32 s56, {sT}, 32
    s_add_u32 s55, s55, s56
    s_lshl_b32 s55, s55, 2
    s_add_u32 s55, s55, {OFF_FKV}""", start=8)
    E0 = 122
    mk = {}
    for hd in range(2):
        for d in range(4): S.ops(f"v_cvt_pk_bf16_f32 v{128+4*hd+d}, v{ACC+8*hd+2*d}, v{ACC+8*hd+1+2*d}", E0)
    for i in range(5):
        src = ACC + 16 + 4 + 4 * i
        for d in range(2): S.ops(f"v_cvt_pk_bf16_f32 v{138+2*i+d}, v{src+2*d}, v{src+2*d+1}", E0)
        S.op(f"ds_write_b64 v23, {vr(138+2*i,2)} offset:{16*i}", 6, E0)
    S.op(lambda: mk.__setitem__("vw", A.lg), 0, E0)
    for hd in range(2): S.ops(f"buffer_store_dwordx4 {vr(128+4*hd,4)}, {vL16}, {WS}, s{50+hd} offen sc1", E0)
    S.op(lambda: A.wait_lg(mk["vw"]), 4, E0)
    for hd in range(2):
        for kg in range(2):
            b = 148 + 8*hd + 4*kg
            for r_ in range(2): S.ops(f"ds_read_b64_tr_b16 {vr(b+2*r_,2)}, v{25+hd} offset:{(16*kg+8*r_)*80}", E0)
            S.op(lambda k=(hd, kg): mk.__setitem__(k, A.lg), 0, E0)
    for d in range(2): S.ops(f"v_cvt_pk_bf16_f32 v{136+d}, v{ACC+16+2*d}, v{ACC+17+2*d}", E0)
    S.ops(f"buffer_store_dwordx2 {vr(136,2)}, v20, {WS}, s50 offen offset:{KV_R} sc1", E0)
    for hd in range(2):
        for kg in range(2):
            b = 148 + 8*hd + 4*kg
            S.op(lambda k=(hd, kg): A.wait_lg(mk[k]), 4, E0)
            for d in range(4): S.ops(f"v_cndmask_b32 v{b+d}, v29, v{b+d}, vcc", E0)
            S.ops(f"buffer_store_dwordx4 {vr(b,4)}, v27, {WS}, s{50+hd} offen offset:{(KV_V0, KV_V1)[kg]} sc1", E0)
    for d in range(4): S.ops(f"v_mul_f32 v{ACC+40+d}, s53, v{ACC+40+d}", E0)
    for d in range(2): S.ops(f"v_cvt_pk_bf16_f32 v{30+d}, v{ACC+40+2*d}, v{ACC+41+2*d}", E0)
    S.op(f"ds_write_b64 v21, {vr(30,2)}", 6, E0)
    for hd in range(2): S.op(f"ds_write_b128 v19, {vr(128+4*hd,4)} offset:{1024*hd}", 8, E0)
    S.op(f"ds_write_b64 v19, {vr(136,2)} offset:2048", 6, E0)
    seen = set()
    FI = Fine(A, cfg, "p1"); FI()
    for f, (s, t) in enumerate(order):
        if s not in seen: A.wait(vm=S.need(("t", s)), lg=rd[f]); seen.add(s)
        else: A.wait_lg(rd[f])
        if f % 16 == 0: FI()
        d = vr(ACC + 16*t, 16)
        A(f"{MF32} {d}, {vr(WF+4*(f%4),4)}, {ar(4*s,4)}, {d if s else '0'}")
        if f + 4 < 160: wread(f + 4)
        if f == E0 - 1:
            while S.vq: S.pop_vm()
        S.gap(f, 16)
    FI(); S.flush(); FI.done()
    stamp(A, cfg, 7)
    LG = A.label("g2ok")
    A.wait_vm(S.marks[("g", nld2 - 1)])
    gather_check(A, nld2, vG2)
    A(f"s_cbranch_vccz {LG}")
    st = A.side_begin(); gather_spin(A, 640, nld2, vG2); A.side_end(st)
    A(f"{LG}:")
    gather_write(A, nld2, vG2)
    for d in range(0, 16, 2): A(f"v_pk_mul_f32 {vr(ACC+48+d,2)}, {vr(ACC+48+d,2)}, s[52:53] op_sel:[0,1] op_sel_hi:[1,1]")
    for hd in range(2):
        for d in range(4): A(f"v_cvt_pk_bf16_f32 v{32+4*hd+d}, v{ACC+48+8*hd+2*d}, v{ACC+49+8*hd+2*d}")
        A(f"ds_write_b128 v22, {vr(32+4*hd,4)} offset:{4096*hd}")
    set_flag(A, "s55")
    A("s_waitcnt lgkmcnt(0)\ns_barrier")
    stamp(A, cfg, 8)

aO, aQ, aQR, aKV = 0, 64, 80, (84, 110)
vS, vC, vP = (64, 96), (128, 160), 48
vKR, vV = "v16", "v17"
sK0, sK1, sKB, sFB, sIT = "s44", "s45", "s46", "s47", "s48"
def kvreg(b, what):
    o = {"k0": 0, "k1": 4, "kr": 8, "v00": 10, "v01": 14, "v10": 18, "v11": 22}[what]
    return ar(aKV[b] + o, 2 if what == "kr" else 4)
def kv_loads(A, b, konly=False):
    A(f"buffer_load_dwordx2 {kvreg(b,'kr')}, {vKR}, {WS}, {sK0} offen offset:{KV_R} sc1")
    A(f"buffer_load_dwordx4 {kvreg(b,'k0')}, {vL16}, {WS}, {sK0} offen sc1")
    if not konly:
        A(f"buffer_load_dwordx4 {kvreg(b,'v00')}, {vV}, {WS}, {sK0} offen offset:{KV_V0} sc1")
        A(f"buffer_load_dwordx4 {kvreg(b,'v01')}, {vV}, {WS}, {sK0} offen offset:{KV_V1} sc1")
    A(f"buffer_load_dwordx4 {kvreg(b,'k1')}, {vL16}, {WS}, {sK1} offen sc1")
    if not konly:
        A(f"buffer_load_dwordx4 {kvreg(b,'v10')}, {vV}, {WS}, {sK1} offen offset:{KV_V0} sc1")
        A(f"buffer_load_dwordx4 {kvreg(b,'v11')}, {vV}, {WS}, {sK1} offen offset:{KV_V1} sc1")
    A(f"s_add_u32 {sK0}, {sK0}, {2*KVB}\ns_add_u32 {sK1}, {sK1}, {2*KVB}")
def qk_rem(b, kt, qp, c):
    return f"{MF2B} {vr(vS[qp],32)}, {kvreg(b,'kr')}, {ar(aQR+2*qp,2)}, {c} cbsz:1 abid:{kt}"
def qk_main(b, kt, qp, t):
    d = vr(vS[qp] + 16*t, 16)
    return f"{MF32} {d}, {kvreg(b,'k%d'%kt)}, {ar(aQ+4*(2*qp+t),4)}, {d}"
def pv(b, kt, qp, g):
    d = ar(aO + 16*(2*qp + (g >> 1)), 16)
    return f"{MF32} {d}, {kvreg(b,'v%d%d'%(kt, g & 1))}, {vr(vP+4*g,4)}, {d}"

def att_slot(A, n):
    b, kt, qp = n >> 2, (n >> 1) & 1, n & 1
    p = (n - 1) % 8; pb, pkt, pqp = p >> 2, (p >> 1) & 1, p & 1
    x = (n + 1) % 8; xb, xkt, xqp = x >> 2, (x >> 1) & 1, x & 1
    for g in range(4):
        s0 = vS[qp] + 8*g
        E = [f"v_exp_f32 v{s0+i}, v{s0+i}" for i in range(8)]
        C = [f"v_cvt_pk_bf16_f32 v{vP+4*g+i}, v{s0+2*i}, v{s0+2*i+1}" for i in range(4)]
        prev = pv(pb, pkt, pqp, 3) if g == 0 else pv(b, kt, qp, g - 1)
        if g == 0:
            A("\n".join(E[0:2])); A(prev)
            if n % 4 == 0: kv_loads(A, pb)
            if n % 4 == 3: A("s_waitcnt vmcnt(0)")
            A("\n".join(E[2:5])); A(qk_rem(xb, xkt, xqp, vr(vC[xqp], 32)))
            A("\n".join(E[5:8] + C))
        elif g == 1:
            A("\n".join(E[0:3])); A(prev)
            if n == 7: A(f"s_sub_u32 {sIT}, {sIT}, 1\ns_cmp_gt_u32 {sIT}, 1")
            A("\n".join(E[3:8] + C))
        else:
            A("\n".join(E[0:2])); A(prev)
            A("\n".join(E[2:5])); A(qk_main(xb, xkt, xqp, g - 2))
            A("\n".join(E[5:8] + C))


T3, T4, T5, TEND = 0, 7, 22, 37
sR3, sR4, sR5 = "s42", "s43", "s49"
vX1 = 232
def ring_items(S, A, n, after=0):
    sr = sR3 if n < T4 else sR4 if n < T5 else sR5
    dma_items(S, A, n, n % 9, sr, (lambda t: "v15") if n == T4 - 1 else (lambda t: vL16), after)
def ring_addr(n0, f): return lds_addr(((n0 * 16 + f) % 144) * 1024)
RS = None

def p2(A, cfg):
    global RS
    LP = A.label("attpass"); LL = A.label("attloop"); LF = A.label("attfb"); LOK = A.label("attok"); LI = A.label("attint"); LX = A.label("attexit")
    A(f"""s_and_b32 s51, {sWV}, 1
    s_lshr_b32 s52, {sWV}, 1
    s_lshl_b32 s54, s51, 12
    s_lshl_b32 s55, s52, 11
    s_add_u32 s54, s54, s55
    v_add_u32 v24, s54, {vL16}
    v_xor_b32 v25, 0x800, v24
    s_lshr_b32 s54, s54, 2
    v_lshlrev_b32 v26, 3, {vL}
    v_add_u32 v26, s54, v26
    v_xor_b32 v27, 0x200, v26
    v_add_u32 v26, {L_Q + 8192}, v26
    v_add_u32 v27, {L_Q + 8192}, v27
    v_lshrrev_b32 v18, 5, {vL}
    s_lshl_b32 s54, s51, 10
    s_add_u32 s54, s54, {L_K0}
    v_lshl_add_u32 v20, v18, 9, s54
    s_lshl_b32 s54, s51, 9
    s_add_u32 s54, s54, {L_K0 + 2048}
    v_mov_b32 v21, s54
    ds_read_b64 v[52:53], v21
    ds_read_b128 v[48:51], v20
    ds_read_b64 {ar(aQR,2)}, v26
    ds_read_b64 {ar(aQR+2,2)}, v27
    ds_read_b128 {ar(aQ,4)}, v24 offset:{L_Q}
    ds_read_b128 {ar(aQ+4,4)}, v24 offset:{L_Q+1024}
    ds_read_b128 {ar(aQ+8,4)}, v25 offset:{L_Q}
    ds_read_b128 {ar(aQ+12,4)}, v25 offset:{L_Q+1024}
    v_and_b32 v19, 31, {vL}
    s_mov_b32 s50, {KVB}
    v_lshlrev_b32 v20, 3, v19
    v_mad_u32_u24 {vKR}, v18, s50, v20
    v_mul_u32_u24 v21, 320, v18
    v_lshl_add_u32 v21, v19, 4, v21
    v_and_b32 v22, 27, v19
    v_cmp_eq_u32 vcc, 24, v22
    v_mov_b32 v22, {OOB}
    v_mov_b32 v23, 640
    v_cndmask_b32 v22, v22, v23, vcc
    v_cmp_gt_u32 vcc, 20, v19
    s_lshl_b32 s53, {sJ}, 1
    s_add_u32 s53, s53, s51
    v_cndmask_b32 {vV}, v22, v21, vcc
    s_mul_i32 s53, s53, {64*KVB}
    s_add_u32 s53, s53, {OFF_KV}
    s_mul_i32 s54, s52, {32*KVB}
    s_add_u32 {sKB}, s53, s54
    s_mov_b32 {sFB}, 0
    s_waitcnt lgkmcnt(0)""")
    for d in range(6): A(f"v_xor_b32 v{48+d}, 0x80008000, v{48+d}")
    A(f"""s_lshl_b32 s52, s52, 8
    s_nop 0""")
    for qp in range(2): A(f"{MF2B} {vr(vC[qp],32)}, v[52:53], {ar(aQR+2*qp,2)}, 0")
    A(f"""s_lshl_b32 s50, {sJ}, 9
    s_add_u32 s50, s50, s52
    s_add_u32 s50, s50, {OFF_FKV}""")
    side_process(A)
    for qp in range(2):
        for t in range(2):
            d = vr(vC[qp] + 16*t, 16)
            A(f"{MF32} {d}, v[48:51], {ar(aQ+4*(2*qp+t),4)}, {d}")
    A(f"""v_lshlrev_b32 v12, 2, {vL}
    s_lshl_b32 s51, {sCB}, 7
    s_add_u32 s51, s51, {OFF_FWO}
    s_lshl_b32 s52, {sJ}, 7
    s_add_u32 s52, s52, {OFF_FWG}
    v_min_u32 v13, 19, v19
    v_min_u32 v14, 29, v19
    v_lshl_add_u32 v13, v13, 2, s51
    v_lshl_add_u32 v14, v14, 2, s52
    v_cmp_gt_u32 vcc, 32, {vL}
    s_lshl_b32 s51, {sCB}, 8
    s_add_u32 s51, s51, {OFF_FWD}
    v_cndmask_b32 v13, v14, v13, vcc
    v_min_u32 v14, 47, {vL}
    v_lshl_add_u32 v14, v14, 2, s51
    s_mul_i32 {sR3}, {sCB}, 102400
    s_add_u32 {sR3}, {sR3}, {sWB}
    s_add_u32 {sR3}, {sR3}, {OFF_WOF - 16384}
    s_mul_i32 {sR4}, {sJ}, 245760
    s_add_u32 {sR4}, {sR4}, {sWB}
    s_add_u32 {sR4}, {sR4}, {OFF_WGUF - 16384}
    s_mul_i32 {sR5}, {sCB}, 245760
    s_add_u32 {sR5}, {sR5}, {sWB}
    s_add_u32 {sR5}, {sR5}, {OFF_WDF - 16384}
    s_cmp_eq_u32 {sWV}, 0
    s_cselect_b32 s53, 0, {OOB}
    v_or_b32 v15, s53, {vL16}
    s_mov_b32 {sK0}, {sKB}
    s_add_u32 {sK1}, {sKB}, {KVB}""")
    stamp(A, cfg, 9)
    apoll(A, "s50", 32, 21, "pkv")
    stamp(A, cfg, 10)
    kv_loads(A, 0)
    set_flag(A, sSF, mark=-1)
    A("s_barrier")
    A(f"{LP}:")
    for d in range(4): A(f"v_mov_b32 v{vP+12+d}, 0")
    for d in range(4): A(f"v_accvgpr_write_b32 a{aKV[1]+22+d}, 0")
    A(f"s_mov_b32 {sIT}, 8\ns_nop 0")
    for t in range(4): A(f"{MF32} {ar(aO+16*t,16)}, {vr(vP+12,4)}, {vr(vP+12,4)}, 0")
    A("s_waitcnt vmcnt(1)")
    A(qk_rem(0, 0, 0, vr(vC[0], 32)))
    A.nop(18)
    A(qk_main(0, 0, 0, 0)); A(qk_main(0, 0, 0, 1))
    A.nop(11)
    stamp(A, cfg, 11)
    A(".p2align 3")
    A(f"{LL}:")
    t0 = A.loop_begin()
    for n in range(8): att_slot(A, n)
    A(f"s_cbranch_scc1 {LL}")
    A.loop_end(t0)
    A(f"""s_cmp_eq_u32 {sIT}, 0
    s_cbranch_scc1 {LX}
    buffer_load_dword v10, v13, {WS}, 0 offen sc1
    buffer_load_dword v11, v14, {WS}, 0 offen sc1
    s_branch {LL}
    {LX}:""")
    newpath(A)
    A(pv(1, 1, 1, 3))
    stamp(A, cfg, 12)
    LSF = A.label("sfok")
    A(f"""v_cmp_ne_u32 vcc, {sTAG}, v10
    v_cmp_ne_u32 s[60:61], {sTAG}, v11
    s_or_b64 vcc, vcc, s[60:61]
    s_cbranch_vccz {LSF}""")
    st = A.side_begin(); poll(A, [("v13", "0", 0), ("v14", "0", 0)], 10, "pside"); A.side_end(st)
    assert cfg.o_pre % 4 == 0
    A(f"{LSF}:")
    RS = S = Sched(A)
    for n in range(T4): ring_items(S, A, n)
    A(f"""s_lshl_b32 s50, {sWV}, 13
    s_add_u32 s50, s50, {L_MRG}
    v_add_u32 v18, s50, {vL16}
    s_xor_b32 s51, s50, {2 << 13}
    s_lshl_b32 s52, {sWV}, 2
    s_add_u32 s52, s52, {L_FLAG}
    v_mov_b32 v20, s52""")
    for q in range(4): A(f"ds_write_b128 v18, {ar(aO+32+4*q,4)} offset:{1024*q}")
    A(f"""v_accvgpr_read_b32 v76, a{aO+12}
    v_accvgpr_read_b32 v92, a{aO+16+12}
    v_accvgpr_read_b32 v22, a{aO+32+12}
    s_mov_b32 s53, {fbits(2.0**60) if not cfg.force_fallback else fbits(1e-30)}""")
    for q in range(4): A(f"ds_write_b128 v18, {ar(aO+48+4*q,4)} offset:{4096+1024*q}")
    A(f"""v_accvgpr_read_b32 v23, a{aO+48+12}
    v_cmp_nge_f32 vcc, s53, v76
    v_cmp_nge_f32 s[60:61], s53, v92
    s_or_b64 vcc, vcc, s[60:61]
    v_cmp_nge_f32 s[60:61], s53, v22
    s_or_b64 vcc, vcc, s[60:61]
    v_cmp_nge_f32 s[60:61], s53, v23
    s_or_b64 vcc, vcc, s[60:61]
    s_cselect_b32 s54, 1, 0
    v_mov_b32 v22, s54
    ds_write_b32 v20, v22
    s_xor_b32 s51, {sWV}, 2
    s_lshl_b32 s51, s51, 13
    s_add_u32 s51, s51, {L_MRG}
    v_add_u32 v19, s51, {vL16}
    v_mov_b32 v21, {L_FLAG}""")
    LND = A.label("nodma")
    A(f"s_cmp_lg_u32 {sFB}, 0\ns_cbranch_scc1 {LND}")
    for _ in range(cfg.o_pre): S.pop_vm()
    A(f"{LND}:")
    for d in range(12): A(f"v_accvgpr_read_b32 v{64+d}, a{aO+d}")
    for d in range(12): A(f"v_accvgpr_read_b32 v{80+d}, a{aO+16+d}")
    A(f"""s_waitcnt lgkmcnt(0)
    s_barrier
    ds_read_b128 v[24:27], v21""")
    mf = A.lg
    mk = []
    for t in range(2):
        for q in range(4): A(f"ds_read_b128 {vr(96+16*t+4*q,4)}, v19 offset:{4096*t+1024*q}")
        mk.append(A.lg)
    A(f"""v_bfe_u32 v28, {vL}, 4, 1
    v_mul_u32_u24 v28, 20480, v28
    v_and_b32 v29, 15, {vL}
    v_lshl_add_u32 v28, v29, 4, v28
    v_lshrrev_b32 v29, 5, {vL}
    v_cmp_eq_u32 vcc, 0, v29
    v_lshl_add_u32 v29, v29, 8, v28
    v_mov_b32 v30, {OOB}
    s_lshr_b32 s52, {sWV}, 1
    v_cndmask_b32 v28, v30, v28, vcc
    s_lshl_b32 s50, {sRB}, 1
    s_add_u32 s55, s50, s52
    s_mul_i32 s50, s55, {4*20480}
    s_mul_i32 s51, {sJ}, 1280
    s_add_u32 s50, s50, s51
    s_add_u32 s50, s50, {OFF_O}
    s_and_b32 s56, {sWV}, 1
    s_lshl_b32 s51, s56, 3
    s_add_u32 s51, s51, s50
    s_mul_i32 s52, s56, 768
    s_add_u32 s50, s50, s52""")
    A.wait_lg(mf)
    A(f"""v_or3_b32 v24, v24, v25, v26
    v_or_b32 v24, v24, v27
    s_nop 0
    v_readfirstlane_b32 s54, v24
    s_nop 0
    s_cmp_gt_u32 s54, {sFB}
    s_cbranch_scc1 {LF}""")
    for t in range(2):
        o, r_ = 64 + 16*t, 96 + 16*t
        A.wait_lg(mk[t])
        A(f"v_add_f32 v{o+12}, v{o+12}, v{r_+12}\nv_rcp_f32 v{o+12}, v{o+12}")
        for d in range(0, 12, 2): A(f"v_pk_add_f32 {vr(o+d,2)}, {vr(o+d,2)}, {vr(r_+d,2)}")
        for d in range(0, 12, 2): A(f"v_pk_mul_f32 {vr(o+d,2)}, {vr(o+d,2)}, {vr(o+12,2)} op_sel_hi:[1,0]")
        for d in range(6): A(f"v_cvt_pk_bf16_f32 v{32+8*t+d}, v{o+2*d}, v{o+2*d+1}")
        A(f"buffer_store_dwordx4 {vr(32+8*t,4)}, v29, {WS}, s50 offen sc1")
        A(f"buffer_store_dwordx2 {vr(36+8*t,2)}, v28, {WS}, s51 offen offset:512 sc1")
        if t == 0: A(f"s_add_u32 s50, s50, {2*20480}\ns_add_u32 s51, s51, {2*20480}")
    m_o = A.vm
    A(f"""s_lshl_b32 s50, s55, 9
    s_lshl_b32 s51, {sJ}, 1
    s_add_u32 s51, s51, s56
    s_lshl_b32 s51, s51, 2
    s_add_u32 s50, s50, s51
    s_add_u32 s50, s50, {OFF_FO}
    v_cmp_gt_u32 vcc, 2, {vL}
    v_lshlrev_b32 v31, 8, {vL}""")
    for _ in range(cfg.o_mid): S.pop_vm()
    A("v_cndmask_b32 v31, v30, v31, vcc")
    set_flag(A, "s50", mark=m_o, voff="v31")
    A(f"s_branch {LOK}")
    A(f"{LF}:")
    LM = A.label("attmax")
    A(f"""s_waitcnt vmcnt(0) lgkmcnt(0)
    s_mov_b32 {sFB}, 1
    s_mov_b32 {sIT}, 16
    s_mov_b32 {sK0}, {sKB}
    s_add_u32 {sK1}, {sKB}, {KVB}""")
    for t in range(4): A(f"v_mov_b32 v{32+t}, 0xff800000")
    A(f"{LM}:")
    t0 = A.loop_begin()
    kv_loads(A, 0, True)
    A("s_waitcnt vmcnt(0)")
    for kt in range(2):
        for qp in range(2): A(qk_rem(0, kt, qp, "0"))
        A.nop(18)
        for qp in range(2):
            for t in range(2): A(qk_main(0, kt, qp, t))
        A.nop(12)
        for t in range(4):
            for d in range(0, 16, 2): A(f"v_max3_f32 v{32+t}, v{64+16*t+d}, v{65+16*t+d}, v{32+t}")
    A(f"s_sub_u32 {sIT}, {sIT}, 1\ns_cmp_lg_u32 {sIT}, 0\ns_cbranch_scc1 {LM}")
    A.loop_end(t0)
    for t in range(4): A(f"v_mov_b32 v{36+t}, v{32+t}")
    A("s_nop 1")
    for t in range(4): A(f"v_permlane32_swap_b32 v{32+t}, v{36+t}")
    for t in range(4): A(f"v_max_f32 v{32+t}, v{32+t}, v{36+t}")
    A(f"""s_barrier
    ds_write_b128 v18, v[32:35]
    s_waitcnt lgkmcnt(0)
    s_barrier
    ds_read_b128 v[36:39], v19
    s_mov_b32 {sK0}, {sKB}
    s_add_u32 {sK1}, {sKB}, {KVB}""")
    kv_loads(A, 0)
    A("s_waitcnt vmcnt(0) lgkmcnt(0)\ns_barrier")
    for t in range(4): A(f"v_max_f32 v{32+t}, v{32+t}, v{36+(t^2)}")
    for t in range(4):
        for d in range(16): A(f"v_sub_f32 v{vC[0]+16*t+d}, 0, v{32+t}")
    A(f"s_branch {LP}")
    newpath(A)
    A(f"{LOK}:")
    stamp(A, cfg, 13)

def gemm16(A, S, n0, KS, visible, FI, areg=lambda s: 4*s, hook=None):
    WF, ACC = 24, 64
    rd = {}
    def wread(f):
        if f % 16 == 0 and f:
            m = n0 + f // 16
            if m > visible: A.wait_vm(S.need(("w", m, 3)))
            if m > visible or any(a == m for (_k, _f, a, _s) in S.vq): A("s_barrier"); S.bar = m
        va, im = ring_addr(n0, f)
        A(f"ds_read_b128 {vr(WF+4*(f%10),4)}, {va} offset:{im}")
        rd[f] = A.lg
    for f in range(10): wread(f)
    FI()
    for s in range(KS):
        if s % (KS // 10 + (KS % 10 > 0)) == 1: FI()
        if hook: hook(s)
        for t in range(5):
            f = 5*s + t
            if t == 0: A.wait(vm=S.need(("t", s)), lg=rd[f+1])
            elif t == 2: A.wait_lg(rd[f+2])
            d = vr(ACC+4*t, 4)
            A(f"{MF16} {d}, {vr(WF+4*(f%10),4)}, {ar(areg(s),4)}, {d if s else '0'}")
            if f + 10 < 5*KS: wread(f + 10)
            S.gap(f, 0)
    FI(); FI.done()

def tile_addr(A):
    A(f"""v_and_b32 v20, 15, {vL}
    v_lshrrev_b32 v21, 4, {vL}
    v_mul_u32_u24 v16, 1280, v20
    v_lshl_add_u32 v17, v21, 3, v16
    v_lshl_add_u32 v16, v21, 4, v16
    s_mul_i32 s47, {sCB}, 160
    s_mul_i32 s46, {sTT}, 20480
    s_add_u32 s46, s46, s47
    s_add_u32 s47, s47, {L_MOD2}
    v_lshl_add_u32 v18, v21, 4, s47
    v_lshl_add_u32 v19, v21, 3, s47""")
def vec_read(A, dst, vec):
    A(f"""ds_read_b128 {vr(dst,4)}, v18 offset:{1280*vec}
    ds_read_b128 {vr(dst+4,4)}, v18 offset:{1280*vec+64}
    ds_read_b64 {vr(dst+8,2)}, v19 offset:{1280*vec+128}""")

vCS = 184
def p3(A, cfg):
    S = RS
    tile_addr(A)
    A(f"""buffer_load_dwordx4 v[96:99], v16, {XS}, s46 offen
    buffer_load_dwordx4 v[100:103], v16, {XS}, s46 offen offset:64
    buffer_load_dwordx2 v[104:105], v17, {XS}, s46 offen offset:128""")
    S.flush()
    vec_read(A, 108, 0); vec_read(A, 120, 2)
    A(f"""v_and_b32 v12, 31, {vL}
    s_lshr_b32 s48, {sTT}, 1
    s_lshl_b32 s50, s48, 8
    s_add_u32 s50, s50, {OFF_FO}
    s_mul_i32 s51, {sTT}, 20480
    s_add_u32 s51, s51, {OFF_O - 4096}
    v_lshlrev_b32 v8, 4, v20
    v_lshl_add_u32 v9, v21, 9, v8
    v_and_b32 v10, 1, v21
    v_lshl_add_u32 v8, v10, 3, v8
    v_lshrrev_b32 v10, 1, v21
    v_lshl_add_u32 v8, v10, 9, v8
    v_add_u32 v8, 0x1000, v8
    v_cmp_eq_u32 vcc, 0, v21
    v_lshlrev_b32 v10, 6, v20
    v_mov_b32 v11, {OOB}
    s_mul_i32 s52, s48, 40960
    v_cndmask_b32 v10, v11, v10, vcc
    s_and_b32 s45, {sTT}, 1
    s_lshl_b32 s53, s45, 8
    s_add_u32 s52, s52, s53
    s_mul_i32 s53, {sCB}, 5120
    s_add_u32 s52, s52, s53
    s_add_u32 s52, s52, {OFF_X1S}
    s_lshl_b32 s53, {sTT}, 10
    s_lshl_b32 s54, {sCB}, 3
    s_add_u32 s53, s53, s54
    s_add_u32 s53, s53, {OFF_ST}
    v_cmp_gt_u32 vcc, 32, {vL}
    v_lshrrev_b32 v13, 5, {vL}
    v_lshlrev_b32 v12, 6, v12
    v_lshl_add_u32 v12, v13, 5, v12
    v_cndmask_b32 v13, v11, v12, vcc
    s_mul_i32 s54, {sJ}, 6
    s_add_u32 s54, s54, {sWV}
    s_lshl_b32 s54, s54, 11
    s_add_u32 s54, s54, {OFF_CSB}
    s_and_b32 s55, {sWV}, 1
    s_sub_u32 s55, s55, {sWV}
    s_add_u32 s55, s55, 4
    s_lshl_b32 s55, s55, 11
    s_add_u32 s55, s55, s54
    s_waitcnt lgkmcnt(0)""")
    for d in range(10):
        unpack(A, 136+2*d, 137+2*d, 108+d)
        unpack(A, 160+2*d, 161+2*d, 120+d)
    stamp(A, cfg, 14)
    apoll(A, "s50", 32, 23, "po")
    stamp(A, cfg, 15)
    S.every = 4; S.last = -99; S.bar = 0
    for s in range(20): tok_item(S, A, s, "s51")
    for k in range(2):
        S.vm(("c", 2*k), lambda k=k: A(f"buffer_load_dwordx4 {vr(vCS+6*k,4)}, v12, {WS}, s{54+k} offen sc1"))
        S.vm(("c", 2*k+1), lambda k=k: A(f"buffer_load_dwordx2 {vr(vCS+6*k+4,2)}, v13, {WS}, s{54+k} offen offset:16 sc1"))
    for n in (T4, T4 + 1): ring_items(S, A, n)
    for _ in range(cfg.p3_up): S.pop_vm()
    for d in range(10): unpack(A, vX1+2*d, vX1+2*d+1, 96+d)
    A("s_barrier")
    gemm16(A, S, T3, 20, T4 - 1, Fine(A, cfg, 'p3'))
    stamp(A, cfg, 16)
    A.nop(6)
    for d in range(0, 20, 2): A(f"v_pk_fma_f32 {vr(vX1+d,2)}, {vr(64+d,2)}, {vr(136+d,2)}, {vr(vX1+d,2)}")
    for d in range(0, 20, 2): A(f"v_pk_mul_f32 {vr(160+d,2)}, {vr(160+d,2)}, {vr(vX1+d,2)}")
    for d in range(10): A(f"v_cvt_pk_bf16_f32 v{100+d}, v{160+2*d}, v{161+2*d}")
    A(f"""buffer_store_dwordx4 v[100:103], v9, {WS}, s52 offen sc1
    buffer_store_dwordx4 v[104:107], v9, {WS}, s52 offen offset:2048 sc1
    buffer_store_dwordx2 v[108:109], v8, {WS}, s52 offen sc1
    v_pk_add_f32 v[112:113], {vr(vX1,2)}, {vr(vX1+2,2)}
    v_pk_mul_f32 v[114:115], {vr(vX1,2)}, {vr(vX1,2)}""")
    for d in range(2, 20, 2):
        if d > 2: A(f"v_pk_add_f32 v[112:113], v[112:113], {vr(vX1+d,2)}")
        A(f"v_pk_fma_f32 v[114:115], {vr(vX1+d,2)}, {vr(vX1+d,2)}, v[114:115]")
    A("""v_add_f32 v112, v112, v113
    v_add_f32 v113, v114, v115
    v_mov_b32 v114, v112
    v_mov_b32 v115, v113
    s_nop 0
    v_permlane16_swap_b32 v112, v114
    v_permlane16_swap_b32 v113, v115
    v_pk_add_f32 v[112:113], v[112:113], v[114:115]
    v_mov_b32 v114, v112
    v_mov_b32 v115, v113
    s_nop 0
    v_permlane32_swap_b32 v112, v114
    v_permlane32_swap_b32 v113, v115
    v_pk_add_f32 v[112:113], v[112:113], v[114:115]""")
    A(f"buffer_store_dwordx2 v[112:113], v10, {WS}, s53 offen sc1")
    m_x = A.vm
    A(f"""s_lshl_b32 s50, s48, 8
    s_lshl_b32 s51, {sCB}, 1
    s_add_u32 s51, s51, s45
    s_lshl_b32 s51, s51, 2
    s_add_u32 s50, s50, s51
    s_add_u32 s50, s50, {OFF_FX1}
    s_barrier""")
    S.flush()
    for n in range(T4 + 2, T4 + 2 + cfg.x_turns): ring_items(S, A, n)
    for _ in range(cfg.x_mid): S.pop_vm()
    set_flag(A, "s50", mark=m_x)
    stamp(A, cfg, 17)

def p4(A, cfg):
    WF, ACC = 32, 64
    S = RS
    S.flush()
    A(f"""s_lshl_b32 s50, {sWV}, 10
    s_add_u32 s50, s50, {L_EXT}
    v_add_u32 v8, s50, {vL16}
    s_and_b32 s50, {sWV}, 1
    s_lshl_b32 s50, s50, 10
    s_add_u32 s50, s50, {L_EXT + 4096}
    v_add_u32 v9, s50, {vL16}""")
    for k in range(2):
        b, e = vCS + 6*k, 96 + 4*k
        A(f"""v_pk_add_f32 {vr(b,2)}, {vr(b,2)}, {vr(b+2,2)}
        v_pk_add_f32 {vr(b,2)}, {vr(b,2)}, {vr(b+4,2)}
        v_cvt_pk_bf16_f32 v{e}, v{b}, v{b}
        v_lshlrev_b32 v{b+2}, 16, v{e}
        v_sub_f32 v{b+2}, v{b}, v{b+2}
        v_cvt_pk_bf16_f32 v{e+1}, v{b+2}, v{b+1}
        v_and_b32 v{b+3}, 0xffff0000, v{e+1}
        v_sub_f32 v{b+3}, v{b+1}, v{b+3}
        v_cvt_pk_bf16_f32 v{e+2}, v{b+1}, v{b+3}
        v_mov_b32 v{e+3}, 0
        ds_write_b128 v{8+k}, {vr(e,4)}""")
    A(f"""s_lshl_b32 s50, {sT}, 8
    s_add_u32 s50, s50, {OFF_FX1}
    s_lshl_b32 s51, {sT}, 11
    s_add_u32 s51, s51, {OFF_ST}
    s_mul_i32 s52, {sT}, 40960
    s_add_u32 s52, s52, {OFF_X1S - 4096}
    v_bfe_u32 v8, {vL}, 4, 1
    v_mul_u32_u24 v8, 49152, v8
    v_lshl_add_u32 v8, v20, 4, v8
    v_lshrrev_b32 v9, 5, {vL}
    v_lshl_add_u32 v8, v9, 8, v8
    s_mul_i32 s53, {sT}, {2*49152}
    s_add_u32 s53, s53, {OFF_HH}
    s_lshl_b32 s55, {sJ}, 10
    s_add_u32 s54, s53, s55
    s_add_u32 s53, s54, s55
    s_add_u32 s54, s54, {32*1024}
    s_lshl_b32 s55, {sT}, 8
    s_lshl_b32 s56, {sJ}, 2
    s_add_u32 s55, s55, s56
    s_add_u32 s55, s55, {OFF_FHH}
    s_add_u32 s56, s55, 16384
    s_lshl_b32 s57, s48, 8
    s_add_u32 s57, s57, {OFF_FHH}
    s_add_u32 s58, s57, 16384
    s_mul_i32 s59, {sTT}, 49152
    s_add_u32 s59, s59, {OFF_HH - 4096}""")
    apoll(A, "s50", 16, 23, "px1")
    stamp(A, cfg, 18)
    vis = T4 + 1 + cfg.x_turns
    A(f"""buffer_load_dwordx4 v[96:99], v12, {WS}, s51 offen sc1
    buffer_load_dwordx4 v[100:103], v12, {WS}, s51 offen offset:16 sc1""")
    mst = A.vm
    S.every = cfg.p4_every / 2; S.last = -99; S.bar = T4 + 1; S.marks = {}
    s = 0; n = vis + 1
    for _ in range(20): tok_item(S, A, s, "s52"); s += 1
    while s < 40:
        ring_items(S, A, n, n - 7); n += 1
        for _ in range(5): tok_item(S, A, s, "s52"); s += 1
    while n <= T5 - 1 + 7: ring_items(S, A, n, n - 7); n += 1
    for _ in range(cfg.p4_up): S.pop_vm()
    A("s_waitcnt lgkmcnt(0)\ns_barrier")
    va, im = lds_addr(L_EXT)
    for nt in range(6): A(f"ds_read_b128 {vr(160+4*nt,4)}, {va} offset:{im+1024*nt}")
    mex = A.lg
    order = wgu_order()
    rd = {}
    def wread(f):
        if f % 16 == 0 and f:
            m = T4 + f // 16
            if m > vis: A.wait_vm(S.need(("w", m, 3)))
            if m >= T4 + 2: A("s_barrier"); S.bar = m
        va, im = ring_addr(T4, f)
        A(f"ds_read_b128 {vr(WF+4*(f%4),4)}, {va} offset:{im}")
        rd[f] = A.lg
    for f in range(4): wread(f)
    A.wait_vm(mst)
    e = 184
    K0, K1, SG = 190, 192, 194
    c0 = -2 * 0.7978845608028654 * LOG2E
    A(f"""v_pk_add_f32 v[96:97], v[96:97], v[98:99]
    v_pk_add_f32 v[100:101], v[100:101], v[102:103]
    v_pk_add_f32 v[96:97], v[96:97], v[100:101]
    v_mov_b32 v98, v96
    v_mov_b32 v99, v97
    s_nop 0
    v_permlane32_swap_b32 v96, v98
    v_permlane32_swap_b32 v97, v99
    v_add_f32 v96, v96, v98
    v_add_f32 v97, v97, v99
    v_mul_f32 v96, {fbits(-1/640)}, v96
    v_mul_f32 v97, {fbits(1/640)}, v97
    v_fma_f32 v97, -v96, v96, v97
    v_max_f32 v97, 0, v97
    v_add_f32 v{SG}, {fbits(1e-5)}, v97
    v_rsq_f32 v98, v{SG}
    v_mov_b32 v{e+3}, 0
    v_mul_f32 v97, v{SG}, v98
    v_cvt_pk_bf16_f32 v{e+1}, v96, v97
    v_lshlrev_b32 v100, 16, v{e+1}
    v_and_b32 v101, 0xffff0000, v{e+1}
    v_sub_f32 v100, v96, v100
    v_sub_f32 v101, v97, v101
    v_cvt_pk_bf16_f32 v{e}, v96, v100
    v_cvt_pk_bf16_f32 v{e+2}, v101, v97
    v_mul_f32 v{K0}, {fbits(c0)}, v98
    v_mul_f32 v99, v98, v98
    v_mul_f32 v{K1}, {fbits(0.044715)}, v99
    v_mul_f32 v{K1}, v{K1}, v{K0}""")
    A.wait_lg(mex)
    for nt in range(6): A(f"{MF32} {vr(ACC+16*nt,16)}, {vr(160+4*nt,4)}, {vr(e,4)}, 0")
    E0 = 163
    mk = {}
    for p in range(2):
        for a_ in range(2):
            g, u, t = ACC + 32*p + 8*a_, ACC + 32*p + 16 + 8*a_, 200 + 8*a_
            for h_ in range(2):
                R = range(4*h_, 4*h_ + 4)
                for d in R: S.ops(f"v_mul_f32 v{t+d}, v{g+d}, v{g+d}", E0)
                for d in R: S.ops(f"v_fma_f32 v{t+d}, v{t+d}, v{K1}, v{K0}", E0)
                for d in R: S.ops(f"v_mul_f32 v{t+d}, v{t+d}, v{g+d}", E0)
                for d in R: S.ops(f"v_exp_f32 v{t+d}, v{t+d}\nv_mul_f32 v{u+d}, v{u+d}, v{g+d}", E0)
                for d in R: S.ops(f"v_fma_f32 v{t+d}, v{t+d}, v{SG}, v{SG}", E0)
                for d in R: S.ops(f"v_rcp_f32 v{t+d}, v{t+d}", E0)
                for d in R: S.ops(f"v_mul_f32 v{u+d}, v{u+d}, v{t+d}", E0)
            for d in range(4): S.ops(f"v_cvt_pk_bf16_f32 v{g+d}, v{u+2*d}, v{u+2*d+1}", E0)
            S.ops(f"buffer_store_dwordx4 {vr(g,4)}, v8, {WS}, s53 offen offset:{1024*p+512*a_} sc1", E0)
    S.op(lambda: mk.__setitem__("a", A.vm), 0, E0)
    seen = set()
    FI = Fine(A, cfg, "p4"); FI()
    for f, (s, nt) in enumerate(order):
        if f % 24 == 1: FI()
        if s not in seen: A.wait(vm=S.need(("t", s)), lg=rd[f]); seen.add(s)
        elif f < 160 or f % 2 == 0: A.wait_lg(rd[f + (1 if f >= 160 else 0)])
        d = vr(ACC+16*nt, 16)
        A(f"{MF32} {d}, {vr(WF+4*(f%4),4)}, {ar(4*s,4)}, {d}")
        if f + 4 < 240: wread(f + 4)
        S.gap(f, 16 if f < 160 else cfg.p4_budget)
    FI(); S.flush(); FI.done()
    stamp(A, cfg, 19)
    set_flag(A, "s55", mark=mk["a"])
    A("s_barrier")
    S.bar = 99
    for n in (T5 + 7, T5 + 8): ring_items(S, A, n)
    S.flush()
    B0 = " op_sel_hi:[1,0,0]"
    for a_ in range(2):
        g, u, t = ACC + 64 + 8*a_, ACC + 80 + 8*a_, 200
        for d in range(0, 8, 2): A(f"v_pk_mul_f32 {vr(t+d,2)}, {vr(g+d,2)}, {vr(g+d,2)}")
        for d in range(0, 8, 2): A(f"v_pk_fma_f32 {vr(t+d,2)}, {vr(t+d,2)}, {vr(K1,2)}, {vr(K0,2)}{B0}")
        for d in range(0, 8, 2): A(f"v_pk_mul_f32 {vr(t+d,2)}, {vr(t+d,2)}, {vr(g+d,2)}")
        for d in range(8): A(f"v_exp_f32 v{t+d}, v{t+d}")
        for d in range(0, 8, 2): A(f"v_pk_mul_f32 {vr(u+d,2)}, {vr(u+d,2)}, {vr(g+d,2)}")
        for d in range(0, 8, 2): A(f"v_pk_fma_f32 {vr(t+d,2)}, {vr(t+d,2)}, {vr(SG,2)}, {vr(SG,2)}{B0}")
        for d in range(8): A(f"v_rcp_f32 v{t+d}, v{t+d}")
        A("s_nop 0")
        for d in range(0, 8, 2): A(f"v_pk_mul_f32 {vr(u+d,2)}, {vr(u+d,2)}, {vr(t+d,2)}")
        for d in range(4): A(f"v_cvt_pk_bf16_f32 v{g+d}, v{u+2*d}, v{u+2*d+1}")
    stamp(A, cfg, 20)

def p5(A, cfg):
    S = RS
    vec_read(A, 108, 3)
    apoll(A, "s57", 16, 23, "phha")
    stamp(A, cfg, 21)
    S.every = cfg.p5_every; S.last = -99; S.bar = T5 + 1; S.marks = {}
    up = cfg.p5_up; flagged = []
    for s in range(up): tok_item(S, A, s, "s59")
    S.flush()
    for a_ in range(2): A(f"buffer_store_dwordx4 {vr(128+8*a_,4)}, v8, {WS}, s54 offen offset:{512*a_} sc1")
    m_b = A.vm
    s = up; n = T5 + 9
    while s < 32:
        for _ in range(4):
            if s < 32: tok_item(S, A, s, "s59"); s += 1
        if n < TEND and s >= 20: ring_items(S, A, n, n - 7); n += 1
    def pb():
        exec_lanes(A, 16); apoll_issue(A, "s58", 23); A("s_mov_b64 exec, -1")
    def chk():
        LB = A.label("hbok")
        A.wait_vm(S.marks[("pb", 0)])
        exec_lanes(A, 16)
        A(f"v_cmp_ne_u32 vcc, {sTAG}, v23\ns_mov_b64 exec, -1\ns_cbranch_vccz {LB}")
        assert flagged
        st = A.side_begin()
        apoll(A, "s58", 16, 23, "phhb")
        A.side_end(st)
        A(f"{LB}:")
    S.vm(("pb", 0), pb, start=5 * (cfg.p5_chk - 6))
    if n < TEND: ring_items(S, A, n, n - 7); n += 1
    S.vm(("chk", 0), chk, start=5 * cfg.p5_chk)
    while s < 48:
        for _ in range(4): tok_item(S, A, s, "s59"); s += 1
        if n < TEND: ring_items(S, A, n, n - 7); n += 1
    assert n == TEND
    A("s_waitcnt lgkmcnt(0)")
    for d in range(10): unpack(A, 160+2*d, 161+2*d, 108+d)
    A("s_barrier")
    def hook(s):
        if s == cfg.p5_flag: set_flag(A, "s56", mark=m_b); flagged.append(1)
    gemm16(A, S, T5, 48, T5 + 8, Fine(A, cfg, 'p5'), hook=hook)
    stamp(A, cfg, 22)
    A.nop(6)
    for d in range(0, 20, 2): A(f"v_pk_fma_f32 {vr(vX1+d,2)}, {vr(64+d,2)}, {vr(160+d,2)}, {vr(vX1+d,2)}")
    for d in range(10): A(f"v_cvt_pk_bf16_f32 v{100+d}, v{vX1+2*d}, v{vX1+2*d+1}")
    A(f"""buffer_store_dwordx4 v[100:103], v16, {OUTS}, s46 offen
    buffer_store_dwordx4 v[104:107], v16, {OUTS}, s46 offen offset:64
    buffer_store_dwordx2 v[108:109], v17, {OUTS}, s46 offen offset:128""")

SEQ = [("p1", p1), ("p2", p2), ("p3", p3), ("p4", p4), ("p5", p5)]
```

```python
import sys, os, math, struct
sys.path.insert(0, os.path.dirname(os.path.abspath(__file__)))
from asmlib import *
from layout import *

NAME = "adaLN_cond__softmax_full_mha__glu_gated_geglu__prompt"
def fbits(x): return "0x%08x" % struct.unpack("<I", struct.pack("<f", x))[0]
LOG2E = 1.4426950408889634
QSCALE = (20 ** -0.5) * LOG2E
OOB = "0x80000000"

sW, sWV, sRB, sJ, sTAG, sT = "s2", "s3", "s4", "s5", "s6", "s7"
WS, XS, OUTS, WMOD, WQKV, CS, GEN = "s[8:11]", "s[12:15]", "s[16:19]", "s[20:23]", "s[24:27]", "s[28:31]", "s[32:35]"
sROLE, sU, sLG, sWB = "s36", "s37", "s38", "s39"
sTT, sCB = "s40", "s41"
vL16, vL16b, vL16c, vTAG, vL, vST, vF0 = "v1", "v2", "v3", "v4", "v5", "v6", "v7"
vL4 = "v252"
RING = 36 * 4096
L_MOD2 = RING
L_EXT = RING + 5120
L_MOD1 = L_EXT
L_RED = RING + 11264
L_STAT = RING + 11776
L_FLAG = RING + 12032
LDS_BYTES = 163840

class Cfg:
    stop = None
    stamps = False
    dump_q = False
    force_fallback = False
    p1_up = 10; o_pre = 8; o_mid = 8; p3_up = 10; x_turns = 6; x_mid = 8; p4_up = 10; p4_every = 5; p4_budget = 28; p5_up = 12; p5_flag = 6; p5_every = 3
    hint_early = 1; p1_pre = 4; p5_chk = 22
    fine = None; sleep = 0
    probe = None

def lds_addr(off):
    return [vL16, vL16b, vL16c][off >> 16], off & 0xffff

def vr(base, n): return f"v[{base}:{base+n-1}]" if n > 1 else f"v{base}"
def ar(base, n): return f"a[{base}:{base+n-1}]" if n > 1 else f"a{base}"

def stamp(A, cfg, n):
    if cfg.probe == n:
        A("s_memrealtime s[94:95]\ns_waitcnt lgkmcnt(0)")
    if not cfg.stamps: return
    A(f"""s_memrealtime s[98:99]
    s_memtime s[96:97]
    s_waitcnt lgkmcnt(0)
    v_writelane_b32 {vST}, s98, {n}
    v_writelane_b32 {vST}, s96, {32+n}""")

class Fine:
    def __init__(self, A, cfg, name): self.A = A; self.on = cfg.stamps and cfg.fine == name; self.k = 0
    def __call__(self):
        if self.on and self.k < 12:
            self.A.lines.append(f"    s_memtime s[{64+2*self.k}:{65+2*self.k}]"); self.k += 1
    def done(self):
        if not self.on: return
        self.A("s_waitcnt lgkmcnt(0)")
        for k in range(self.k): self.A(f"v_writelane_b32 {vST}, s{64+2*k}, {(23+k) if k < 8 else (55+k-8)}")

def unpack(A, lo, hi, src):
    A(f"v_lshlrev_b32 v{lo}, 16, v{src}")
    A(f"v_and_b32 v{hi}, 0xffff0000, v{src}")

def poll(A, loads, tmpv, nm="poll"):
    L = A.label(nm); E = A.label(nm + "e")
    A("s_mov_b32 s62, 0x20000")
    A(f"{L}:")
    for k, (vo, so, imm) in enumerate(loads):
        A(f"buffer_load_dword v{tmpv+k}, {vo}, {WS}, {so} offen offset:{imm} sc1")
    A("s_sub_u32 s62, s62, 1")
    A(f"s_cbranch_scc1 {E}")
    A("s_waitcnt vmcnt(0)")
    A(f"v_cmp_ne_u32 vcc, {sTAG}, v{tmpv}")
    for k in range(1, len(loads)):
        A(f"v_cmp_ne_u32 s[60:61], {sTAG}, v{tmpv+k}")
        A("s_or_b64 vcc, vcc, s[60:61]")
    A(f"s_cbranch_vccnz {L}")
    A(f"{E}:")
    A("s_waitcnt vmcnt(0)")

def exec_lanes(A, n):
    A(f"s_mov_b64 exec, {(1 << n) - 1}" if n < 32 else "s_mov_b32 exec_hi, 0")
def apoll_issue(A, soff, tmpv):
    A(f"v_mov_b32 v{tmpv}, 0\nbuffer_atomic_or v{tmpv}, {vL4}, {WS}, {soff} offen sc0 sc1")
def apoll(A, soff, n, tmpv, nm="ap"):
    L = A.label(nm); E = A.label(nm + "e")
    exec_lanes(A, n)
    A(f"s_mov_b32 s62, 0x20000\n{L}:")
    apoll_issue(A, soff, tmpv)
    A(f"""s_sub_u32 s62, s62, 1
    s_cbranch_scc1 {E}
    s_waitcnt vmcnt(0)
    v_cmp_ne_u32 vcc, {sTAG}, v{tmpv}
    s_cbranch_vccnz {L}
    {E}:
    s_waitcnt vmcnt(0)
    s_mov_b64 exec, -1""")

def set_flag(A, soff, imm=0, mark=None, voff=None):
    if mark != -1: A.wait_vm(A.vm if mark is None else mark)
    A(f"buffer_atomic_swap {vTAG}, {voff or vF0}, {WS}, {soff} offen offset:{imm} sc1")

def prologue(A, cfg):
    A(f"""s_cmp_ge_u32 {sW}, 256
    s_cbranch_scc1 L_end
    s_load_dwordx16 s[64:79], s[0:1], 0
    s_load_dwordx8 s[80:87], s[0:1], 64
    v_lshrrev_b32 v8, 6, v0
    v_and_b32 {vL}, 63, v0
    v_readfirstlane_b32 {sWV}, v8
    v_lshlrev_b32 {vL16}, 4, {vL}
    v_cmp_eq_u32 vcc, 0, {vL}
    v_mov_b32 {vF0}, {OOB}
    s_and_b32 s50, {sW}, 7
    s_lshr_b32 s51, {sW}, 3
    v_cndmask_b32 {vF0}, {vF0}, {vL}, vcc
    s_lshr_b32 {sRB}, s50, 1
    s_lshl_b32 {sRB}, {sRB}, 2
    s_and_b32 s52, s51, 3
    s_add_u32 {sRB}, {sRB}, s52
    s_and_b32 {sJ}, s50, 1
    s_lshl_b32 {sJ}, {sJ}, 3
    s_lshr_b32 s52, s51, 2
    s_add_u32 {sJ}, {sJ}, s52
    s_sub_u32 s52, s51, 10
    s_lshr_b32 s53, s52, 2
    s_lshl_b32 s53, s53, 3
    s_add_u32 s53, s53, s50
    s_lshl_b32 {sLG}, s53, 7
    s_and_b32 s52, s52, 3
    s_lshl_b32 s52, s52, 5
    s_add_u32 {sLG}, {sLG}, s52
    s_cmp_lt_u32 s53, 20
    s_cselect_b32 {sROLE}, 0, 3
    s_sub_u32 {sU}, {sW}, 192
    s_cmp_lt_u32 {sU}, 60
    s_cselect_b32 {sROLE}, 2, {sROLE}
    s_mul_i32 s52, s50, 640
    s_lshl_b32 s53, s51, 6
    s_add_u32 s52, s52, s53
    s_add_u32 s52, s52, 2560
    s_cmp_lt_u32 s51, 10
    s_cselect_b32 {sROLE}, 1, {sROLE}
    s_cselect_b32 {sLG}, s52, {sLG}
    s_mov_b32 s10, {WS_SIZE}
    s_mov_b32 s11, 0x20000
    s_mov_b32 s14, 2621440
    s_mov_b32 s15, 0x20000
    s_mov_b32 s22, 4915200
    s_mov_b32 s23, 0x20000
    s_mov_b32 s26, 2457600
    s_mov_b32 s27, 0x20000
    s_mov_b32 s30, 1280
    s_mov_b32 s31, 0x20000
    v_mov_b32 {vST}, 0
    s_waitcnt lgkmcnt(0)
    s_mov_b64 s[8:9], s[86:87]
    s_mov_b64 s[12:13], s[64:65]
    s_mov_b64 s[20:21], s[80:81]
    s_mov_b64 s[24:25], s[66:67]
    s_mov_b64 s[28:29], s[78:79]""")
    A(f"buffer_load_dword {vTAG}, {vST}, {WS}, 0 offen offset:{OFF_EPOCH} sc1")
    stamp(A, cfg, 0)

def late_ids(A):
    A(f"""v_add_u32 {vL16b}, 0x10000, {vL16}
    v_add_u32 {vL16c}, 0x20000, {vL16}
    s_lshl_b32 {sT}, {sRB}, 2
    s_add_u32 {sT}, {sT}, {sWV}
    s_lshl_b32 {sWB}, {sWV}, 12
    s_lshr_b32 {sCB}, {sJ}, 1
    s_and_b32 s52, {sJ}, 1
    s_lshl_b32 s52, s52, 2
    s_lshl_b32 {sTT}, {sRB}, 3
    s_add_u32 {sTT}, {sTT}, s52
    s_add_u32 {sTT}, {sTT}, {sWV}
    s_mov_b64 s[16:17], s[82:83]
    s_mov_b32 s18, 2621440
    s_mov_b32 s19, 0x20000
    s_mov_b32 s35, 0x20000""")

def x_issue(A):
    A(f"""v_and_b32 v8, 7, v0
    v_lshrrev_b32 v9, 3, v0
    v_mul_u32_u24 v10, 1280, v8
    v_lshl_add_u32 v10, v9, 4, v10
    v_cmp_gt_u32 vcc, 128, v0
    v_mov_b32 v11, {OOB}
    s_lshl_b32 s49, {sRB}, 4
    s_add_u32 s49, s49, {sJ}
    v_cndmask_b32 v11, v11, v10, vcc
    s_mul_i32 s49, s49, {8*1280}
    buffer_load_dwordx4 v[16:19], v10, {XS}, s49 offen
    buffer_load_dwordx4 v[20:23], v10, {XS}, s49 offen offset:512
    buffer_load_dwordx4 v[24:27], v11, {XS}, s49 offen offset:1024""")

def tag_ready(A, mark):
    A.wait_vm(mark)
    A(f"""v_add_u32 {vTAG}, {TAG_INC}, {vTAG}
    s_nop 0
    v_readfirstlane_b32 {sTAG}, {vTAG}""")

GC, GW, GS = 128, 144, 184
def gemv_issue(A, NC):
    if NC == 2:
        A(f"""v_lshrrev_b32 v12, 1, v0
        v_and_b32 v13, 1, v0
        v_lshlrev_b32 v14, 3, v12
        v_lshlrev_b32 v15, 1, v12
        buffer_load_dwordx2 {vr(GC,2)}, v14, {CS}, 0 offen
        buffer_load_ushort v{GC+2}, v15, {CS}, 0 offen offset:1024
        v_mul_u32_u24 v12, 7680, v12
        v_lshlrev_b32 v13, 4, v13
        v_lshl_add_u32 v14, v12, 2, v13
        v_add_u32 v15, v12, v13""")
        mc = A.vm
        for i in range(5):
            A(f"s_add_u32 s50, {sLG}, {7680*i if i < 4 else 512*7680}")
            A(f"buffer_load_dwordx4 {vr(GW+4*i,4)}, v{14 if i < 4 else 15}, {WMOD}, s50 offen")
    else:
        A(f"""v_lshrrev_b32 v12, 2, v0
        v_and_b32 v13, 3, v0
        v_mul_u32_u24 v14, 20, v12
        buffer_load_dwordx4 {vr(GC,4)}, v14, {CS}, 0 offen
        buffer_load_dword v{GC+4}, v14, {CS}, 0 offen offset:16
        v_mul_u32_u24 v12, {76800}, v12
        v_lshl_add_u32 v14, v13, 4, v12""")
        mc = A.vm
        for i in range(10):
            A(f"s_add_u32 s50, {sLG}, {7680*i}")
            A(f"buffer_load_dwordx4 {vr(GW+4*i,4)}, v14, {WMOD}, s50 offen")
    return mc
def gemv_silu(A, NL):
    T = GS + 10
    for i in range(NL):
        if i % 2 == 0: A(f"v_lshlrev_b32 v{GS+i}, 16, v{GC+i//2}")
        else: A(f"v_and_b32 v{GS+i}, 0xffff0000, v{GC+i//2}")
    for i in range(NL): A(f"v_mul_f32 v{T+i}, {fbits(-LOG2E)}, v{GS+i}")
    for i in range(NL): A(f"v_exp_f32 v{T+i}, v{T+i}")
    for i in range(NL): A(f"v_add_f32 v{T+i}, 1.0, v{T+i}")
    for i in range(NL): A(f"v_rcp_f32 v{T+i}, v{T+i}")
    for i in range(NL): A(f"v_mul_f32 v{GS+i}, v{GS+i}, v{T+i}")
    for i in range(NL): A(f"v_cvt_pk_bf16_f32 v{GS+i}, v{GS+i}, v{GS+i}")
    for i in range(NL): A(f"v_lshlrev_b32 v{GS+i}, 16, v{GS+i}")
def gemv_partial(A, NC, marks=None, hook=None, hookpos=0):
    NL = 5 if NC == 2 else 10
    t = GS + 10
    for r in range(NL):
        if marks: A.wait_vm(marks[r])
        if hook and hookpos == 2 and r == NL - 1: hook()
        for d in range(4): unpack(A, t+8+2*d, t+9+2*d, GW+4*r+d)
        so = (GS + r) & ~1; hi = (GS + r) & 1
        for d in range(4):
            if r == 0: A(f"v_pk_mul_f32 {vr(t+2*d,2)}, {vr(t+8+2*d,2)}, {vr(so,2)} op_sel:[0,{hi}] op_sel_hi:[1,{hi}]")
            else: A(f"v_pk_fma_f32 {vr(t+2*d,2)}, {vr(t+8+2*d,2)}, {vr(so,2)}, {vr(t+2*d,2)} op_sel:[0,{hi},0] op_sel_hi:[1,{hi},1]")
    A(f"""v_lshrrev_b32 v{t+8}, 4, {vL}
    v_and_b32 v{t+9}, {NC-1}, {vL}""")
    for i in range(4): A(f"v_permlane32_swap_b32 v{t+i}, v{t+4+i}")
    for i in range(4): A(f"v_add_f32 v{t+i}, v{t+i}, v{t+4+i}")
    A(f"""v_lshl_add_u32 v{t+8}, v{t+9}, 2, v{t+8}
    s_lshl_b32 s50, {sWV}, 7""")
    for i in range(2): A(f"v_permlane16_swap_b32 v{t+i}, v{t+2+i}")
    for i in range(2): A(f"v_add_f32 v{t+i}, v{t+i}, v{t+2+i}")
    A(f"s_add_u32 s50, s50, {L_RED}")
    for ror in ((8, 4, 2) if NC == 2 else (8, 4)):
        A("s_nop 0" if ror == 8 else "s_nop 1")
        for i in range(2): A(f"v_add_f32_dpp v{t+i}, v{t+i}, v{t+i} row_ror:{ror} row_mask:0xf bank_mask:0xf")
    A(f"""v_lshl_add_u32 v{t+8}, v{t+8}, 3, s50
    ds_write_b64 v{t+8}, {vr(t,2)}
    s_waitcnt lgkmcnt(0)
    s_barrier""")
    if hook and hookpos == 1: hook()
def gemv_publish(A, NC):
    t = GS + 10
    A(f"""v_and_b32 v{t+8}, 15, {vL}
    v_lshlrev_b32 v{t+8}, 3, v{t+8}
    v_add_u32 v{t+9}, {L_RED}, v{t+8}
    ds_read_b64 {vr(t,2)}, v{t+9}
    ds_read_b64 {vr(t+2,2)}, v{t+9} offset:128
    ds_read_b64 {vr(t+4,2)}, v{t+9} offset:256
    ds_read_b64 {vr(t+6,2)}, v{t+9} offset:384
    s_mul_hi_u32 s51, {sLG}, {(1<<32)//1280+1}
    s_cmp_eq_u32 s51, 1
    s_cselect_b32 s52, 1.0, 0
    s_cmp_eq_u32 s51, 4
    s_cselect_b32 s52, 1.0, s52
    s_lshl_b32 s50, {sLG}, 1
    s_add_u32 s50, s50, {OFF_MODG}
    v_cmp_gt_u32 vcc, {4*NC}, {vL}
    v_mov_b32 v{t+9}, {OOB}
    s_waitcnt lgkmcnt(0)
    v_cndmask_b32 v{t+9}, v{t+9}, v{t+8}, vcc
    v_pk_add_f32 {vr(t,2)}, {vr(t,2)}, {vr(t+2,2)}
    v_pk_add_f32 {vr(t+4,2)}, {vr(t+4,2)}, {vr(t+6,2)}
    v_pk_add_f32 {vr(t,2)}, {vr(t,2)}, {vr(t+4,2)}
    v_cvt_pk_bf16_f32 v{t+2}, v{t}, v{t+1}""")
    unpack(A, t, t+1, t+2)
    A(f"""v_add_f32 v{t}, s52, v{t}
    v_add_f32 v{t+1}, s52, v{t+1}
    v_cvt_pk_bf16_f32 v{t}, v{t}, v{t+1}
    v_mov_b32 v{t+1}, {vTAG}
    buffer_store_dwordx2 {vr(t,2)}, v{t+9}, {WS}, s50 offen sc1""")

def newpath(A): A.trace.append("s_waitcnt vmcnt(0) lgkmcnt(0)")

def stage_a(A, cfg):
    L1 = A.label("roleN"); LR = A.label("roleR"); LI = A.label("roleI"); LJ = A.label("joinA")
    A(f"s_cmp_lg_u32 {sROLE}, 0\ns_cbranch_scc1 {L1}")
    mc = gemv_issue(A, 2)
    marks = [A.vm - 4 + r for r in range(5)]
    x_issue(A)
    tag_ready(A, mc)
    gemv_silu(A, 5)
    A(f"""s_lshr_b32 s54, {sLG}, 5
    s_mul_hi_u32 s55, s54, {(1<<32)//20+1}
    s_mul_i32 s55, s55, 44
    s_add_u32 s54, s54, s55
    s_lshl_b32 s54, s54, 2
    s_add_u32 s54, s54, {OFF_FM}
    v_cmp_gt_u32 vcc, 16, v0
    v_lshlrev_b32 v12, 10, {vL}
    v_mov_b32 v13, {OOB}
    v_cndmask_b32 v12, v13, v12, vcc""")
    hint = lambda: set_flag(A, "s54", mark=-1, voff="v12")
    gemv_partial(A, 2, marks, hint if cfg.hint_early else None, cfg.hint_early)
    A(f"s_cmp_lg_u32 {sWV}, 0\ns_cbranch_scc1 {LJ}")
    gemv_publish(A, 2)
    if not cfg.hint_early: hint()
    A(f"s_branch {LJ}")
    A(f"{L1}:"); newpath(A)
    A(f"s_cmp_eq_u32 {sROLE}, 2\ns_cbranch_scc1 {LR}")
    x_issue(A)
    mx = A.vm
    A(f"s_cmp_eq_u32 {sROLE}, 3\ns_cbranch_scc1 {LI}")
    gemv_issue(A, 4)
    tag_ready(A, mx)
    A(f"s_branch {LJ}")
    A(f"{LI}:"); newpath(A)
    A(f"""s_getpc_b64 s[52:53]
    L_pc:
    s_and_b32 s50, {sW}, 8
    s_lshr_b32 s50, s50, 1
    s_add_u32 s50, s50, {sWV}
    s_lshl_b32 s50, s50, 13
    v_lshl_add_u32 v12, {vL}, 7, s50
    v_min_u32 v12, L_end-L_pc, v12
    global_load_dword v13, v12, s[52:53]""")
    tag_ready(A, A.vm - 1)
    A(f"s_branch {LJ}")
    A(f"{LR}:"); newpath(A)
    A(f"""s_lshl_b32 {sU}, {sU}, 2
    s_add_u32 {sU}, {sU}, {sWV}
    s_mul_hi_u32 s50, {sU}, {(1<<32)//6+1}
    s_mul_i32 s51, s50, 6
    s_sub_u32 s51, {sU}, s51
    s_mul_i32 s52, s50, {16*3840}
    s_mul_i32 s53, s51, 640
    s_add_u32 s52, s52, s53
    s_mul_i32 s53, {sWV}, 10240""")
    for m in range(10):
        if m < 5:
            A(f"""v_add_u32 v{30+m}, {64*m}, {vL}
            v_mul_u32_u24 v29, 1639, v{30+m}
            v_lshrrev_b32 v29, 16, v29
            v_mul_u32_u24 v29, 3200, v29
            v_lshl_add_u32 v{30+m}, v{30+m}, 4, v29""")
        A(f"s_add_u32 m0, s53, {1024*m}")
        if m == 5: A(f"s_add_u32 s52, s52, {8*3840}")
        else: A("s_nop 0")
        A(f"buffer_load_dwordx4 v{30+m%5}, {WQKV}, s52 offen lds")
    m_dma = A.vm
    x_issue(A)
    A(f"""s_lshr_b32 s54, s51, 1
    s_and_b32 s55, s51, 1
    s_mul_i32 s59, s50, 3072
    s_lshl_b32 s63, s50, 10
    s_add_u32 s56, s63, {120*1024}
    s_add_u32 s58, s56, {-128 & 0xffffffff}
    s_add_u32 s57, s59, 2048
    s_add_u32 s63, s59, 768
    s_add_u32 s62, s59, {-128 & 0xffffffff}
    s_cmp_eq_u32 s54, 1
    s_cselect_b32 s56, s59, s56
    s_cselect_b32 s57, s63, s57
    s_cselect_b32 s58, s62, s58
    s_add_u32 s63, s59, 1152
    s_add_u32 s62, s59, 1664
    s_cmp_eq_u32 s54, 2
    s_cselect_b32 s56, s63, s56
    s_cselect_b32 s57, s63, s57
    s_cselect_b32 s58, s62, s58
    v_mov_b32 v40, s56
    v_mov_b32 v41, s57
    v_mov_b32 v42, s58
    v_and_b32 v43, 31, {vL}
    v_lshrrev_b32 v44, 5, {vL}
    v_lshlrev_b32 v44, 9, v44
    s_mov_b32 s59, 163840""")
    for m in range(5):
        A(f"""v_add_u32 v45, {32*m}, v43
        v_mul_u32_u24 v46, 1639, v45
        v_lshrrev_b32 v46, 16, v46
        v_mul_u32_u24 v47, 40, v46
        v_sub_u32 v45, v45, v47
        v_cmp_gt_u32 vcc, 24, v45
        v_mad_u32_u24 v46, v46, s59, v44
        v_lshl_add_u32 v46, v45, 4, v46
        v_cndmask_b32 v47, v42, v41, vcc
        v_cmp_gt_u32 vcc, 16, v45
        s_nop 1
        v_cndmask_b32 v47, v47, v40, vcc
        v_add_u32 v{35+m}, v46, v47""")
    A(f"""v_lshrrev_b32 v45, 5, {vL}
    v_lshlrev_b32 v45, 3, v45
    v_bfe_u32 v46, {vL}, 2, 2
    v_add_u32 v45, v45, v46
    v_mul_u32_u24 v45, 640, v45
    v_bfe_u32 v46, {vL}, 4, 1
    v_lshl_add_u32 v45, v46, 5, v45
    v_and_b32 v46, 3, {vL}
    v_lshl_add_u32 v45, v46, 3, v45
    v_add_u32 v45, s53, v45
    s_mul_i32 s52, s55, {8*163840}
    s_add_u32 s52, s52, {OFF_WQF}
    s_add_u32 s53, s52, {4*163840}""")
    tag_ready(A, m_dma)
    mk = []
    for m in range(10):
        A(f"ds_read_b64_tr_b16 {vr(64+4*m,2)}, v45 offset:{64*m}")
        A(f"ds_read_b64_tr_b16 {vr(66+4*m,2)}, v45 offset:{64*m+2560}")
        mk.append(A.lg)
        if m >= 3:
            A.wait_lg(mk[m-3])
            A(f"buffer_store_dwordx4 {vr(64+4*(m-3),4)}, v{35+(m-3)%5}, {WS}, s{52+(m-3)//5} offen sc1")
    for m in range(7, 10):
        A.wait_lg(mk[m])
        A(f"buffer_store_dwordx4 {vr(64+4*m,4)}, v{35+m%5}, {WS}, s{52+m//5} offen sc1")
    A(f"""s_mul_i32 s50, s50, 3
    s_add_u32 s50, s50, s54
    s_mul_hi_u32 s54, s50, {(1<<32)//30+1}
    s_mul_i32 s54, s54, 34
    s_add_u32 s50, s50, s54
    s_lshl_b32 s55, s55, 8
    s_add_u32 s50, s50, s55
    s_lshl_b32 s50, s50, 2
    s_add_u32 s50, s50, {OFF_FWQ}
    v_cmp_gt_u32 vcc, 8, {vL}
    v_lshlrev_b32 v12, 11, {vL}
    v_mov_b32 v13, {OOB}
    v_cndmask_b32 v12, v13, v12, vcc""")
    set_flag(A, "s50", voff="v12")
    A(f"{LJ}:")
    stamp(A, cfg, 1)

def gather_setup(A, ngran, ldsdst, t):
    nld = (ngran // 2 + 255) // 256
    last = ngran // 2 - 256 * (nld - 1)
    A(f"""v_lshlrev_b32 v{t+12}, 4, v0
    v_and_b32 v{t+13}, {last-1}, v0
    v_lshlrev_b32 v{t+14}, 3, v0
    v_lshlrev_b32 v{t+15}, 3, v{t+13}
    v_lshlrev_b32 v{t+13}, 4, v{t+13}
    v_add_u32 v{t+14}, {ldsdst}, v{t+14}
    v_add_u32 v{t+15}, {ldsdst}, v{t+15}""")
    return nld
def gather_load(A, g0, nld, k, t, step=1):
    A(f"s_mov_b32 s63, {OFF_MODG + g0*8 + 4096*k*step}")
    A(f"buffer_load_dwordx4 {vr(t+4*k,4)}, v{t+12 if k < nld-1 else t+13}, {WS}, s63 offen sc1")
def gather_check(A, nld, t):
    first = True
    for k in range(nld):
        for d in (1, 3):
            if first: A(f"v_cmp_ne_u32 vcc, {sTAG}, v{t+4*k+d}"); first = False
            else: A(f"v_cmp_ne_u32 s[60:61], {sTAG}, v{t+4*k+d}\ns_or_b64 vcc, vcc, s[60:61]")
def gather_spin(A, g0, nld, t, extra=None, step=1):
    L = A.label("mg"); E = A.label("mge")
    A(f"s_mov_b32 s62, 0x20000\n{L}:")
    for k in range(nld): gather_load(A, g0, nld, k, t, step)
    if extra: extra()
    A(f"s_sub_u32 s62, s62, 1\ns_cbranch_scc1 {E}\ns_waitcnt vmcnt(0)")
    gather_check(A, nld, t)
    A(f"s_cbranch_vccnz {L}\n{E}:\ns_waitcnt vmcnt(0)")
def gather_write(A, nld, t, step=1):
    for k in range(nld):
        A(f"v_mov_b32 v{t+4*k+1}, v{t+4*k+2}")
        A(f"ds_write_b64 v{t+14 if k < nld-1 else t+15}, {vr(t+4*k,2)} offset:{2048*k*step}")

def stage_h(A, cfg):
    late_ids(A)
    LG = A.label("hnw")
    A(f"""v_lshlrev_b32 v29, 5, v8
    v_add_u32 v29, {L_STAT}, v29
    s_lshl_b32 s50, {sWV}, 3
    v_add_u32 v28, s50, v29
    s_cmp_lg_u32 {sROLE}, 0
    s_cbranch_scc1 {LG}
    s_waitcnt vmcnt(2)
    s_cmp_eq_u32 {sWV}, 0
    s_cbranch_scc1 {LG}
    s_waitcnt vmcnt({1 if cfg.hint_early else 0})
    {LG}:""")
    for d in range(12): unpack(A, 64+2*d, 65+2*d, 16+d)
    A("v_pk_add_f32 v[30:31], v[64:65], v[66:67]\nv_pk_mul_f32 v[32:33], v[64:65], v[64:65]")
    for d in range(2, 24, 2):
        if d > 2: A(f"v_pk_add_f32 v[30:31], v[30:31], {vr(64+d,2)}")
        A(f"v_pk_fma_f32 v[32:33], {vr(64+d,2)}, {vr(64+d,2)}, v[32:33]")
    A(f"""v_add_f32 v30, v30, v31
    v_add_f32 v31, v32, v33
    s_nop 0
    v_add_f32_dpp v30, v30, v30 row_ror:8 row_mask:0xf bank_mask:0xf
    v_add_f32_dpp v31, v31, v31 row_ror:8 row_mask:0xf bank_mask:0xf
    v_mov_b32 v32, v30
    v_mov_b32 v33, v31
    s_nop 0
    v_permlane16_swap_b32 v30, v32
    v_permlane16_swap_b32 v31, v33
    v_pk_add_f32 v[30:31], v[30:31], v[32:33]
    v_mov_b32 v32, v30
    v_mov_b32 v33, v31
    s_nop 0
    v_permlane32_swap_b32 v30, v32
    v_permlane32_swap_b32 v31, v33
    v_pk_add_f32 v[30:31], v[30:31], v[32:33]
    ds_write_b64 v28, v[30:31]""")
    nld = 2
    A(f"""s_mul_i32 s50, {sWV}, 80
    v_add_u32 v44, s50, {vL}
    v_and_b32 v45, 15, {vL}
    s_add_u32 s50, s50, 64
    v_add_u32 v45, s50, v45
    v_lshlrev_b32 v46, 3, v44
    v_lshlrev_b32 v47, 3, v45
    v_lshlrev_b32 v44, 4, v44
    v_lshlrev_b32 v45, 4, v45
    v_add_u32 v46, {L_MOD1}, v46
    v_add_u32 v47, {L_MOD1}, v47
    v_lshlrev_b32 {vL4}, 2, {vL}
    s_lshl_b32 s47, {sT}, 8
    s_add_u32 s47, s47, {OFF_FM}
    s_lshr_b32 s48, {sJ}, 3
    s_and_b32 s50, {sRB}, 14
    s_add_u32 s48, s48, s50
    s_lshl_b32 s48, s48, 2
    s_add_u32 s48, s48, {sWV}
    s_lshl_b32 s48, s48, 8
    s_add_u32 s48, s48, {OFF_FWQ}
    s_waitcnt lgkmcnt(0)
    s_barrier
    ds_read_b128 v[52:55], v29
    ds_read_b128 v[56:59], v29 offset:16
    v_lshlrev_b32 v28, 4, v9
    v_add_u32 v28, {L_MOD1}, v28
    v_lshlrev_b32 v10, 9, v9
    v_lshl_add_u32 v10, v8, 4, v10
    v_cmp_gt_u32 vcc, 128, v0
    v_mov_b32 v11, {OOB}
    s_lshr_b32 s50, {sJ}, 2
    s_lshl_b32 s51, {sRB}, 2
    v_cndmask_b32 v11, v11, v10, vcc
    s_add_u32 s54, s50, s51
    s_mul_i32 s50, s54, 40960
    s_and_b32 s55, {sJ}, 3
    s_lshl_b32 s51, s55, 7
    s_add_u32 s50, s50, s51
    s_add_u32 s50, s50, {OFF_H}
    s_add_u32 s51, s50, {32*512}
    s_add_u32 s52, s50, {64*512}
    s_waitcnt lgkmcnt(0)
    v_pk_add_f32 v[52:53], v[52:53], v[54:55]
    v_pk_add_f32 v[56:57], v[56:57], v[58:59]
    v_pk_add_f32 v[52:53], v[52:53], v[56:57]
    v_mul_f32 v52, {fbits(-1/640)}, v52
    v_mul_f32 v53, {fbits(1/640)}, v53
    v_fma_f32 v53, -v52, v52, v53
    v_max_f32 v53, 0, v53
    v_add_f32 v53, {fbits(1e-5)}, v53
    v_rsq_f32 v54, v53""")
    for d in range(0, 24, 2): A(f"v_pk_add_f32 {vr(64+d,2)}, {vr(64+d,2)}, v[52:53] op_sel_hi:[1,0]")
    for d in range(0, 24, 2): A(f"v_pk_mul_f32 {vr(64+d,2)}, {vr(64+d,2)}, v[54:55] op_sel_hi:[1,0]")
    stamp(A, cfg, 2)
    apoll(A, "s47", 20, 48, "pm")
    gather_spin(A, 0, nld, 32, step=0)
    gather_write(A, nld, 32, step=0)
    A("s_waitcnt lgkmcnt(0)\ns_barrier")
    stamp(A, cfg, 3)
    mk = []
    for g in range(3):
        A(f"ds_read_b128 {vr(88+8*g,4)}, v28 offset:{512*g}")
        A(f"ds_read_b128 {vr(92+8*g,4)}, v28 offset:{1280+512*g}")
        mk.append(A.lg)
    for g in range(3):
        A.wait_lg(mk[g])
        for d in range(4):
            unpack(A, 56, 57, 88+8*g+d)
            unpack(A, 58, 59, 92+8*g+d)
            A(f"""v_pk_fma_f32 v[56:57], v[58:59], {vr(64+8*g+2*d,2)}, v[56:57]
            v_cvt_pk_bf16_f32 v{112+4*g+d}, v56, v57""")
        A(f"buffer_store_dwordx4 {vr(112+4*g,4)}, v{10 if g < 2 else 11}, {WS}, s{50+g} offen sc1")
    A(f"""s_lshl_b32 s49, s54, 8
    s_lshl_b32 s55, s55, 4
    s_add_u32 s49, s49, s55
    s_lshl_b32 s55, {sWV}, 2
    s_add_u32 s49, s49, s55
    s_add_u32 s49, s49, {OFF_FH}""")

def finish(A, cfg):
    L = A.label("noep")
    if cfg.stamps:
        stamp(A, cfg, 31)
        A(f"""s_lshl_b32 s50, {sW}, 2
        s_add_u32 s50, s50, {sWV}
        s_lshl_b32 s50, s50, 8
        s_add_u32 s50, s50, {OFF_DBG}
        v_lshlrev_b32 v8, 2, {vL}
        buffer_store_dword {vST}, v8, {WS}, s50 offen""")
    if cfg.stop is None:
        A(f"""s_or_b32 s50, {sW}, {sWV}
        s_cmp_lg_u32 s50, 0
        s_cbranch_scc1 {L}""")
        set_flag(A, "0", OFF_EPOCH)
        A(f"{L}:")
    if cfg.probe is not None:
        if cfg.probe == 31: stamp(A, cfg, 31)
        LS = A.label("spin")
        A(f"""{LS}:
        s_sleep 8
        s_memrealtime s[92:93]
        s_waitcnt lgkmcnt(0)
        s_sub_u32 s92, s92, s94
        s_cmp_lt_u32 s92, 10000
        s_cbranch_scc1 {LS}""")
    A("L_end:\ns_endpgm")

HEAD = f"""; fused adaLN + softmax MHA + GEGLU block, one persistent launch (generated by my gen.py)
; @launch grid=(256,1,1) block=(256,1,1) lds={LDS_BYTES}
.amdgcn_target "amdgcn-amd-amdhsa--gfx950"
.text
.globl {NAME}_kernel
.p2align 8
.type {NAME}_kernel,@function
{NAME}_kernel:
"""
TAIL = f""".section .rodata,"a"
.p2align 6
.amdhsa_kernel {NAME}_kernel
  .amdhsa_next_free_vgpr 512
  .amdhsa_next_free_sgpr 102
  .amdhsa_accum_offset 256
  .amdhsa_group_segment_fixed_size 0
  .amdhsa_kernarg_size 96
  .amdhsa_user_sgpr_count 2
  .amdhsa_user_sgpr_kernarg_segment_ptr 1
  .amdhsa_system_sgpr_workgroup_id_x 1
  .amdhsa_float_denorm_mode_32 3
.end_amdhsa_kernel
"""

def build(cfg):
    import phases
    A = Asm()
    seq = [("pro", prologue), ("a", stage_a), ("h", stage_h)] + phases.SEQ
    for nm, f in seq:
        A.c(f"==================== {nm}")
        f(A, cfg)
        if cfg.stop == nm: break
    finish(A, cfg)
    errs = check(A.trace, "kernel")
    for sd in getattr(A, "sides", []): errs += check(sd, "side")
    return HEAD + A.text() + TAIL, errs

if __name__ == "__main__":
    import argparse
    ap = argparse.ArgumentParser()
    ap.add_argument("-o", default=f"cdna_kernels/{NAME}.s")
    ap.add_argument("--stop"); ap.add_argument("--stamps", action="store_true")
    ap.add_argument("--dump_q", action="store_true"); ap.add_argument("--force_fallback", action="store_true")
    ap.add_argument("--probe", type=int)
    ap.add_argument("--fine")
    ap.add_argument("--set", action="append", default=[])
    a = ap.parse_args()
    for kv in a.set:
        k_, v_ = kv.split("="); assert hasattr(Cfg, k_), k_; setattr(Cfg, k_, int(v_))
    cfg = Cfg(); cfg.fine = a.fine; cfg.probe = a.probe; cfg.stop = a.stop; cfg.stamps = a.stamps; cfg.dump_q = a.dump_q; cfg.force_fallback = a.force_fallback
    sys.modules["gen"] = sys.modules["__main__"]
    s, errs = build(cfg)
    open(a.o, "w").write(s)
    print(f"wrote {a.o}: {len(s)} bytes, {len(errs)} checker findings")
```

```python
import re
from contextlib import contextmanager

class Asm:
    def __init__(self):
        self.lines = []
        self.trace = []
        self.vm = 0
        self.lg = 0
        self._lab = 0
        self.rec = True
        self.autonops = []
        self.coldlines = []
    def __call__(self, s):
        for ln in s.split("\n"):
            t = ln.split(";")[0].strip()
            if not t:
                continue
            if t.endswith(":") or t.startswith("."):
                self.lines.append(("" if t.endswith(":") else "    ") + t)
                continue
            if t[0] in "vdbg" or t.startswith("s_cmp"):
                need = deficit(self.trace[-24:], t)
                if need > 0:
                    self.autonops.append((need, t))
                    self.nop(need)
            self.lines.append("    " + t)
            self.trace.append(t)
            op = t.split()[0]
            if op.startswith("buffer_") or op.startswith("global_"):
                self.vm += 1
            elif op.startswith("ds_"):
                self.lg += 1
        return self
    def c(self, s):
        self.lines.append("    ; " + s)
    def label(self, base="L"):
        self._lab += 1
        return f"{base}_{self._lab}"
    def wait_vm(self, mark):
        n = self.vm - mark
        assert n >= 0
        self(f"s_waitcnt vmcnt({min(n,63)})")
    def wait_lg(self, mark):
        n = self.lg - mark
        assert n >= 0
        self(f"s_waitcnt lgkmcnt({min(n,15)})")
    def wait(self, vm=None, lg=None):
        p = []
        if vm is not None: p.append(f"vmcnt({min(self.vm-vm,63)})")
        if lg is not None: p.append(f"lgkmcnt({min(self.lg-lg,15)})")
        self("s_waitcnt " + " ".join(p))
    def nop(self, n):
        while n > 0:
            k = min(n, 16); self(f"s_nop {k-1}"); n -= k
    def loop_begin(self): return len(self.trace)
    def loop_end(self, start, times=1):
        body = self.trace[start:]
        for _ in range(times): self.trace += body
    def side_begin(self): return (len(self.trace), self.vm, self.lg)
    def side_end(self, st):
        self.sides = getattr(self, "sides", []) + [self.trace[max(0, st[0]-40):]]
        del self.trace[st[0]:]; self.vm = st[1]; self.lg = st[2]
    @contextmanager
    def cold(self, branch, join=None, nm="cold"):
        L = self.label(nm); J = join or self.label(nm + "r")
        self(f"{branch} {L}")
        st = self.side_begin(); hot = self.lines; self.lines = [f"{L}:"]
        yield
        self(f"s_branch {J}")
        self.coldlines += self.lines; self.lines = hot
        self.side_end(st)
        if join is None: self(f"{J}:")
    def fence(self):
        self.trace.append("#fence")
    def text(self): return "\n".join(self.lines) + "\n"

_reg = re.compile(r"^(-|\|)?(abs\()?([vas])(\d+|\[(\d+):(\d+)\])\)?\|?$")
def regs(tok):
    tok = tok.strip()
    if tok in ("vcc",): return [("s", "vcc")]
    if tok in ("vcc_lo", "vcc_hi"): return [("s", "vcc")]
    if tok in ("exec", "exec_lo", "exec_hi"): return [("s", "exec")]
    if tok == "m0": return [("s", "m0")]
    m = _reg.match(tok)
    if not m: return []
    k = m.group(3)
    if m.group(5) is not None:
        return [(k, i) for i in range(int(m.group(5)), int(m.group(6)) + 1)]
    return [(k, int(m.group(4)))]

TRANS = ("v_exp_", "v_log_", "v_rcp_", "v_rsq_", "v_sqrt_", "v_sin_", "v_cos_")
def passes(op):
    if "32x32x4" in op: return 16
    if "32x32" in op: return 8
    if "16x16" in op: return 4
    raise ValueError(op)

class I:
    pass
def parse(t):
    o = I(); o.t = t
    sp = t.split(None, 1); o.op = op = sp[0]
    rest = sp[1] if len(sp) > 1 else ""
    ops = [x.strip() for x in re.split(r",(?![^\[]*\])", rest)] if rest else []
    mods = ""
    if ops:
        l = ops[-1].split(None, 1)
        if len(l) > 1: ops[-1] = l[0]; mods = l[1]
    o.ops = ops; o.mods = mods
    o.kind = "other"; o.w = []; o.r = []
    R = lambda xs: [r for x in xs for r in regs(x)]
    if op.startswith("v_mfma"):
        o.kind = "mfma"; o.D = regs(ops[0]); o.A = regs(ops[1]); o.B = regs(ops[2]); o.C = regs(ops[3])
        o.w = o.D; o.r = o.A + o.B + o.C; o.p = passes(op)
    elif op.startswith("v_"):
        o.kind = "valu"
        o.trans = op.startswith(TRANS)
        o.dpp = ("_dpp" in op) or ("row_" in mods) or ("quad_perm" in mods)
        o.perm = op.startswith("v_permlane")
        o.rl = op.startswith("v_readlane") or op.startswith("v_readfirstlane")
        o.dl = op.startswith("v_dot")
        if o.perm: o.w = R(ops[:2]); o.r = R(ops[:2])
        elif op.startswith(("v_add_co", "v_sub_co", "v_addc_co", "v_subb_co", "v_mad_u64", "v_div_scale")):
            o.w = R(ops[:2]); o.r = R(ops[2:])
        else:
            o.w = R(ops[:1]); o.r = R(ops[1:])
            if op.startswith(("v_fmac", "v_dot2c", "v_writelane", "v_pk_fmac")) or "UNUSED_PRESERVE" in mods or o.dpp:
                o.r = o.r + o.w
        if op == "v_nop": o.w = []; o.r = []
    elif op.startswith("ds_"):
        o.kind = "ds"
        if op.startswith(("ds_read", "ds_bpermute", "ds_permute", "ds_swizzle")): o.w = R(ops[:1]); o.r = R(ops[1:])
        else: o.r = R(ops)
    elif op.startswith(("buffer_", "global_")):
        o.kind = "vm"; o.lds = " lds" in (" " + mods) or "_lds_" in op
        o.store = "store" in op or "atomic" in op
        o.data = []
        if op.startswith(("buffer_wbl2", "buffer_inv")): pass
        elif o.lds: o.r = R(ops) + [("s", "m0")]
        elif op.startswith("buffer_"):
            if o.store:
                o.r = R(ops); o.data = regs(ops[0])
                if "atomic" in op and "sc0" in mods: o.w = regs(ops[0])
            else: o.w = regs(ops[0]); o.r = R(ops[1:])
        else:
            if o.store: o.r = R(ops); o.data = regs(ops[1])
            else: o.w = regs(ops[0]); o.r = R(ops[1:])
    elif op.startswith("s_"):
        o.kind = "salu"
        if op.startswith(("s_cmp", "s_waitcnt", "s_barrier", "s_branch", "s_cbranch", "s_nop", "s_endpgm", "s_setprio", "s_sleep", "s_bitcmp")):
            o.r = R(ops)
            if "vcc" in op: o.r += [("s", "vcc")]
        elif op.startswith(("s_load", "s_memtime", "s_memrealtime", "s_buffer_load")):
            o.kind = "smem"; o.w = R(ops[:1]); o.r = R(ops[1:])
        else:
            o.w = R(ops[:1]); o.r = R(ops[1:])
            if "saveexec" in op: o.w += [("s", "exec")]
    return o

import functools
parse = functools.lru_cache(maxsize=None)(parse)
def deficit(tail, t):
    out = []
    check(tail + [t], verbose=False, last_only=out)
    return max(out) if out else 0

def check(trace, name="", verbose=True, last_only=None):
    errs = []
    hist = []
    pos = 0
    vmq = []; lgq = []; smem = []
    def err(i, p, need, have, why):
        if last_only is not None: last_only.append(need - have)
        errs.append(f"[{name}] {why}: need {need} have {have}\n      prod: {p.t}\n      cons: {i.t}")
    for idx, t in enumerate(trace):
        if t == "#fence":
            continue
        i = parse(t)
        if i.op == "s_waitcnt":
            m = re.search(r"vmcnt\((\d+)\)", t)
            if m:
                n = int(m.group(1)); vmq = vmq[len(vmq)-n:] if n < len(vmq) and n > 0 else ([] if n == 0 else vmq)
            m = re.search(r"lgkmcnt\((\d+)\)", t)
            if m:
                n = int(m.group(1))
                if n == 0: lgq = []; smem = []
                else:
                    if smem: errs.append(f"[{name}] counted lgkmcnt with smem outstanding: {t}")
                    if n < len(lgq): lgq = lgq[len(lgq)-n:]
        rs = set(i.r); ws = set(i.w); touch = rs | ws
        for q, nm in ((vmq, "vmcnt"), (lgq, "lgkmcnt"), (smem, "smem")):
            for p in q:
                if set(p.w) & touch:
                    errs.append(f"[{name}] touches pending {nm} result\n      prod: {p.t}\n      cons: {i.t}")
        for (pp, p) in (hist if last_only is None or idx == len(trace) - 1 else ()):
            d = pos - pp - 1
            pw = set(p.w)
            if p.kind == "valu":
                vw = {r for r in pw if r[0] != "s"}; sw = {r for r in pw if r[0] == "s"}
                if i.kind == "mfma" and vw & rs and d < 2: err(i, p, 2, d, "VALU->MFMA")
                if i.kind == "valu":
                    if p.trans and not i.trans and vw & rs and d < 1: err(i, p, 1, d, "trans->VALU")
                    if (i.perm or i.dpp) and vw & rs and d < 2: err(i, p, 2, d, "VALU->permlane/DPP")
                    if i.rl and vw & rs and d < 1: err(i, p, 1, d, "VALU->readlane")
                    if sw & rs and d < 2: err(i, p, 2, d, "VALU sgpr->VALU const")
                    if ("s","vcc") in sw and i.op.startswith("v_cndmask") and "vcc" in i.t and d < 2: err(i, p, 2, d, "vcc->cndmask")
                    if p.dl and vw & touch and d < 3 and not (i.op == p.op and not (vw & set(regs(i.ops[1]) + regs(i.ops[2])))): err(i, p, 3, d, "DL op result")
                    if ("sdwa" in p.op or "op_sel" in p.mods) and not p.op.startswith("v_pk") and vw & touch and d < 1: err(i, p, 1, d, "opsel/sdwa")
                if i.kind == "vm" and sw & rs and d < 5: err(i, p, 5, d, "VALU sgpr->VMEM")
                if i.kind in ("salu",) and sw & rs and d < 1 and p.rl: err(i, p, 1, d, "readlane sgpr->SALU (pad)")
            elif p.kind == "mfma":
                D = set(p.D)
                far = {2: 5, 4: 8, 8: 12, 16: 20}[p.p]
                if i.kind == "mfma":
                    if D & set(i.A + i.B) and d < far: err(i, p, far, d, "MFMA D->MFMA A/B")
                    if D & set(i.C):
                        if i.C == p.D and i.p == p.p: pass
                        elif d < p.p + 2: err(i, p, p.p + 2, d, "MFMA D->MFMA C overlap")
                    elif D & set(i.D) and d < p.p + 2: err(i, p, p.p + 2, d, "MFMA D->MFMA D WAW")
                elif i.kind in ("valu", "vm", "ds"):
                    if D & touch and d < far: err(i, p, far, d, "MFMA D->VALU/mem")
                if i.kind in ("valu",) and set(p.C) & ws and d < p.p - 1: err(i, p, p.p - 1, d, "MFMA C WAR")
            elif p.kind == "salu":
                if ("s", "m0") in pw and i.kind == "vm" and i.lds and d < 1: err(i, p, 1, d, "m0->DMA")
            elif p.kind == "vm":
                if p.store and len(p.data) >= 3 and set(p.data) & ws:
                    need = 2 if i.kind in ("valu", "mfma") else 1
                    if d < need: err(i, p, need, d, "store data WAR")
        if i.kind == "vm": vmq.append(i)
        elif i.kind == "ds": lgq.append(i)
        elif i.kind == "smem": smem.append(i)
        hist.append((pos, i))
        step = 1
        if i.op == "s_nop": step = int(i.ops[0], 0) + 1
        pos += step
        hist = [(pp, p) for (pp, p) in hist if pos - pp <= 24]
    seen = []
    for e in errs:
        if e not in seen: seen.append(e)
    if verbose:
        for e in seen[:40]: print(e)
    return seen
```

```python
OFF_EPOCH = 0
OFF_FM   = 0x1000
OFF_FWQ  = 0x5000
OFF_FH   = 0x9000
OFF_FKV  = 0xD000
OFF_FO   = 0x11000
OFF_FX1  = 0x15000
OFF_FHH  = 0x19000
OFF_FWO  = 0x25000
OFF_FWD  = 0x25400
OFF_FWG  = 0x25C00
OFF_MODG = 0x27000
OFF_CSB  = 0x30000
OFF_ST   = 0x60000
OFF_WQF  = 0x100000
OFF_WOF  = 0x380000
OFF_WDF  = 0x480000
OFF_WGUF = 0x680000
OFF_H    = 0xA80000
OFF_KV   = 0xD00000
OFF_O    = 0x1280000
OFF_X1S  = 0x1500000
OFF_HH   = 0x1780000
OFF_DBG  = 0x1E00000
WS_SIZE  = 0x2000000
KVB = 2688
KV_R = 1024; KV_V0 = 1280; KV_V1 = 1936
TAG_INC = 0x9E3779B9

def wgu_order():
    return [(s, 2*p + m) for p in range(3) for s in range(40) for m in range(2)]
def wq_order():
    return [(s, t) for s in range(40) for t in range(3)] + [(s, 3) for s in range(40)]
def hh_pos(s):
    return 16 * (s % 3) + s // 3
```

```python
from gen import *

MF32 = "v_mfma_f32_32x32x16_bf16"
MF16 = "v_mfma_f32_16x16x32_bf16"
MF2B = "v_mfma_f32_32x32x4bf16_1k"
L_STG = 7 * 16384
L_VT = 49152
L_Q = 49152 + 10240
L_K0 = L_Q + 10240
L_MRG = 7 * 16384

class Sched:
    def __init__(self, A, every=64):
        self.A = A; self.vq = []; self.q = []; self.every = every; self.last = -999; self.marks = {}; self.bar = 0
        self.forced = []; self.log = []; self.n = 0; self.t = 0; self.minlead = -9999
    def vm(self, key, fn, after=0, start=-1, dl=None, free=False):
        self.n += 1
        self.vq.append(dict(key=key, fn=fn, after=after, start=start, dl=self.n if dl is None else dl, free=free))
    def op(self, text_or_fn, cost=4, start=0): self.q.append((text_or_fn, cost, start))
    def ops(self, text, start=0):
        for ln in text.split("\n"):
            ln = ln.strip()
            if ln: self.op(ln, 8 if ln.startswith(("v_exp", "v_rcp", "v_rsq")) else 14 if ln.startswith("buffer") else 4, start)
    def pop_vm(self, i=0):
        it = self.vq.pop(i)
        assert it["after"] <= self.bar, (it["key"], it["after"], self.bar)
        self.log.append((self.t, it["key"], it["dl"] - self.t))
        it["fn"](); self.marks[it["key"]] = self.A.vm
    def need(self, key):
        while key not in self.marks:
            self.forced.append(key)
            self.pop_vm([it["key"][0] for it in self.vq].index(key[0]))
        return self.marks[key]
    def eligible(self, t):
        seen = set(); best = None
        for i, it in enumerate(self.vq):
            if it["key"][0] in seen: continue
            seen.add(it["key"][0])
            if it["after"] <= self.bar and it["start"] <= t and (best is None or it["dl"] < self.vq[best]["dl"]): best = i
        return best
    def take(self, k, t=0):
        self.t = t
        for _ in range(k):
            i = self.eligible(t)
            if i is not None: self.pop_vm(i)
    def gap(self, t, budget):
        self.t = t
        i = self.eligible(t)
        if i is not None and self.vq[i]["free"]:
            self.pop_vm(i); budget -= 16
        elif i is not None and t - self.last >= self.every:
            self.pop_vm(i); self.last = max(self.last + self.every, t - 24); budget -= 16
        elif i is not None and self.vq[i]["dl"] - t <= self.minlead and t - self.last >= 32:
            self.pop_vm(i); self.last = t; budget -= 16
        while self.q and self.q[0][2] <= t and self.q[0][1] <= budget:
            x, c, _ = self.q.pop(0); budget -= c
            if callable(x): x()
            else: self.A(x)
    def flush_ops(self):
        while self.q:
            x, c, _ = self.q.pop(0)
            if callable(x): x()
            else: self.A(x)
    def flush(self):
        while self.vq: self.pop_vm()
        self.flush_ops()

def dma_items(S, A, n, slot, sreg, va_of, after=0, dl=None):
    def mk(t):
        def f():
            if t == 0: A(f"s_add_u32 m0, {sWB}, {slot * 16384}\ns_add_u32 {sreg}, {sreg}, 16384")
            A(f"buffer_load_dwordx4 {va_of(t)}, {WS}, {sreg} offen offset:{1024*t} sc1 lds")
        return f
    for t in range(4): S.vm(("w", n, t), mk(t), after, dl=None if dl is None else dl - 64 * (3 - t))
def tok_item(S, A, s, sreg, areg=None, key="t", dl=None, start=-1):
    def f():
        if s % 4 == 0: A(f"s_add_u32 {sreg}, {sreg}, 4096")
        A(f"buffer_load_dwordx4 {ar(4*s if areg is None else areg,4)}, {vL16}, {WS}, {sreg} offen offset:{1024*(s%4)} sc1")
    S.vm((key, s), f, dl=dl, start=start)

vSD, vT0, vT1, vT2, vT3, vTO, vT4 = "v224", "v225", "v226", "v227", "v228", "v16", "v17"
vG2 = 232
sSD, sSL, sSS, sSS1 = "s88", "s89", "s87", "s86"
sSA, sSB, sSC, sSF = "s90", "s91", "s92", "s93"

def side_setup(A):
    LJ = A.label("ssJ")
    A(f"""s_lshl_b32 {sSL}, {sWV}, 13
    s_add_u32 {sSL}, {sSL}, {L_STG}
    v_bfe_u32 v29, {vL}, 2, 2
    v_and_b32 v30, 3, {vL}
    v_lshrrev_b32 v31, 2, {vL}
    v_mov_b32 {vT2}, {OOB}
    s_cmp_ge_u32 {sW}, 120""")
    with A.cold("s_cbranch_scc1", LJ): side_setup_d(A)
    A(f"""
    s_mul_hi_u32 s56, {sW}, {(1<<32)//5+1}
    s_mul_i32 s55, s56, 5
    s_sub_u32 s55, {sW}, s55
    s_lshr_b32 s54, {sWV}, 1
    s_and_b32 s53, {sWV}, 1
    s_cmp_eq_u32 s54, 1
    s_cselect_b32 s32, s74, s72
    s_cselect_b32 s33, s75, s73
    s_mov_b32 s34, 1966080
    s_lshl_b32 s57, s56, 1
    s_add_u32 s57, s57, s53
    s_mul_i32 {sSD}, s55, {128*3072}
    s_lshl_b32 s58, s57, 6
    s_add_u32 {sSD}, {sSD}, s58
    s_mov_b32 {sSS}, {16*3072}
    s_mov_b32 {sSS1}, {16*3072}
    v_mul_u32_u24 v31, 3072, v31
    v_lshl_add_u32 {vSD}, v30, 4, v31
    v_lshrrev_b32 v31, 5, {vL}
    v_lshl_add_u32 v29, v31, 3, v29
    v_lshlrev_b32 v29, 6, v29
    v_bfe_u32 v30, {vL}, 4, 1
    v_lshl_add_u32 v29, v30, 5, v29
    v_bfe_u32 v30, {vL}, 1, 1
    v_lshl_add_u32 v29, v30, 3, v29
    v_and_b32 v30, 1, {vL}
    v_lshl_add_u32 v29, v30, 4, v29
    v_add_u32 {vT0}, {sSL}, v29
    v_add_u32 {vTO}, 1024, {vT0}
    v_mov_b32 {vT4}, {vT0}
    v_mul_u32_u24 v30, 1280, v30
    v_lshlrev_b32 v29, 4, v31
    v_sub_u32 v29, v29, v30
    s_lshl_b32 s58, s55, 8
    s_add_u32 s58, s58, {L_MOD2 + 2560}
    v_add_u32 {vT1}, s58, v29
    v_cmp_eq_u32 vcc, 0, v31
    v_lshlrev_b32 v29, 6, {vL}
    s_nop 0
    v_cndmask_b32 {vT2}, {vT2}, v29, vcc
    s_mul_hi_u32 s58, s57, {(1<<32)//3+1}
    s_mul_i32 s59, s58, 3
    s_sub_u32 s57, s57, s59
    s_lshl_b32 s59, s57, 1
    s_add_u32 s59, s59, s54
    s_mul_i32 {sSF}, s59, 5
    s_add_u32 {sSF}, {sSF}, s55
    s_lshl_b32 s63, s58, 5
    s_add_u32 {sSF}, {sSF}, s63
    s_lshl_b32 {sSF}, {sSF}, 2
    s_add_u32 {sSF}, {sSF}, {OFF_FWG}
    s_mul_i32 {sSC}, s58, 6
    s_add_u32 {sSC}, {sSC}, s59
    s_lshl_b32 {sSC}, {sSC}, 11
    s_cmp_ge_u32 s55, 3
    s_cselect_b32 s63, 1, 0
    s_add_u32 s63, s63, s55
    s_lshl_b32 s63, s63, 3
    s_add_u32 {sSC}, {sSC}, s63
    s_add_u32 {sSC}, {sSC}, {OFF_CSB}
    s_mul_i32 s58, s58, 245760
    s_mul_i32 s59, s57, {80*1024}
    s_mov_b32 {sSB}, 2048
    s_add_u32 s58, s58, s59
    s_lshl_b32 s59, s54, 10
    s_add_u32 s58, s58, s59
    s_lshl_b32 s59, s55, 14
    s_add_u32 s58, s58, s59
    s_add_u32 {sSA}, s58, {OFF_WGUF}
    v_mov_b32 {vT3}, {vL16}
    {LJ}:""")
def side_setup_d(A):
    A(f"""s_cmp_ge_u32 {sW}, 216
    s_cselect_b32 s32, s68, s76
    s_cselect_b32 s33, s69, s77
    s_cselect_b32 s54, 96, 0
    s_cselect_b32 s57, 20, 48
    s_mov_b32 s58, {OFF_WDF}
    s_cselect_b32 s58, {OFF_WOF}, s58
    s_mov_b32 s59, {OFF_FWD}
    s_cselect_b32 s59, {OFF_FWO}, s59
    s_cselect_b32 s63, 7, 8
    s_mul_i32 s34, s57, {32*1280}
    s_sub_u32 s54, {sW}, s54
    s_sub_u32 s54, s54, 120
    s_and_b32 s55, s54, 1
    s_lshr_b32 s54, s54, 1
    s_lshl_b32 s55, s55, 2
    s_add_u32 s55, s55, {sWV}
    s_mul_i32 {sSD}, s54, {32*1280}
    s_mul_i32 s56, s55, 160
    s_add_u32 {sSD}, {sSD}, s56
    s_mov_b32 {sSS}, {16*1280}
    s_mov_b32 {sSS1}, {(64 - 16*1280) & 0xffffffff}
    s_lshl_b32 {sSF}, s55, s63
    s_add_u32 {sSF}, {sSF}, s59
    s_lshl_b32 s56, s54, 2
    s_add_u32 {sSF}, {sSF}, s56
    s_mul_hi_u32 s56, s54, {(1<<32)//3+1}
    s_mul_i32 s59, s56, 3
    s_sub_u32 s59, s54, s59
    s_lshl_b32 s63, s59, 4
    s_add_u32 s63, s63, s56
    s_cmp_eq_u32 s57, 20
    s_cselect_b32 s63, s54, s63
    s_mul_i32 s55, s55, s57
    s_add_u32 s55, s55, s63
    s_mul_i32 s55, s55, 5120
    s_add_u32 {sSA}, s55, s58
    s_mov_b32 {sSB}, 1024
    s_mov_b32 {sSC}, 0
    v_mov_b32 {vT3}, {OOB}
    v_mul_u32_u24 v31, 1280, v31
    v_lshl_add_u32 {vSD}, v30, 4, v31
    v_lshrrev_b32 v31, 4, {vL}
    v_lshl_add_u32 v29, v31, 3, v29
    v_lshl_add_u32 v29, v29, 6, {sSL}
    v_lshl_add_u32 {vT0}, v30, 4, v29
    v_add_u32 {vTO}, 8, {vT0}
    v_lshl_add_u32 {vT4}, v30, 3, v29
    v_mov_b32 {vT1}, {L_MOD2}""")

def side_dma(A, m):
    A(f"s_add_u32 m0, {sSL}, {1024*m}")
    A(f"s_add_u32 {sSD}, {sSD}, {sSS if m & 1 else sSS1}" if m else "s_nop 0")
    if m == 6: A(f"v_and_or_b32 {vSD}, {vT3}, v18, {vSD}")
    A(f"buffer_load_dwordx4 {vSD}, {GEN}, {sSD} offen lds")

SF, SV = 208, 176
def side_reads(A, fs):
    for f in fs:
        for r_ in range(2): A(f"ds_read_b64_tr_b16 {ar(SF+4*f+2*r_,2)}, {vT4 if f == 4 else vTO if f & 1 else vT0} offset:{2048*(f>>1)+256*r_}")
        A(f"ds_read_b128 {ar(SV+4*f,4)}, {vT1} offset:{32*f}")
def side_store(A, f):
    if f: A(f"s_add_u32 {sSA}, {sSA}, {sSB}")
    A(f"buffer_store_dwordx4 {ar(SF+4*f,4)}, {vL16 if f < 5 else vT3}, {WS}, {sSA} offen sc1")
def side_mfma(A, f):
    A(f"{MF32} v[32:47], {ar(SV+4*f,4)}, {ar(SF+4*f,4)}, {'v[32:47]' if f else '0'}")

def p1_setup(A, cfg):
    A(f"""v_and_b32 v18, 31, {vL}
    v_cmp_gt_u32 s[58:59], 24, v18
    v_mov_b32 v19, {OOB}
    s_mul_i32 s42, {sJ}, 163840
    s_add_u32 s42, s42, {sWB}
    v_cndmask_b32 v19, v19, {vL16}, s[58:59]
    s_add_u32 s42, s42, {OFF_WQF - 16384}""")
    for c in range(3):
        ws_ = [w for w in range(4) if (c + w) % 3 == 2]
        A(f"s_cmp_eq_u32 {sWV}, {ws_[0]}\ns_cselect_b64 s[58:59], -1, 0")
        if len(ws_) > 1: A(f"s_cmp_eq_u32 {sWV}, {ws_[1]}\ns_cselect_b64 s[58:59], -1, s[58:59]")
        A(f"v_cndmask_b32 v{20+c}, {vL16}, v19, s[58:59]")
    A(f"s_cmp_lt_u32 {sWV}, 2\ns_cselect_b64 s[58:59], -1, 0")
    for c in range(3): A(f"v_cndmask_b32 v{60+c}, {vL16}, v{20+c}, s[58:59]")
    for c in range(3): A(f"v_mov_b32 v{228+c}, v{20+c}")
    gather_setup(A, 1280, L_MOD2, vG2)
    A(f"""s_lshl_b32 s86, {sT}, 8
    s_add_u32 s86, s86, {OFF_FH}
    s_mul_i32 s43, {sT}, 40960
    s_add_u32 s43, s43, {OFF_H - 4096}""")

def p1(A, cfg):
    WF, ACC = 32, 64
    m_h = A.vm
    S = Sched(A)
    nld2 = 3
    def va(n):
        return lambda t: (f"v{228 + (n + t) % 3}" if n < 7 else f"v{60 + (n + t) % 3}" if n == 7 else vL16)
    PRE = cfg.p1_pre
    for n in range(PRE): dma_items(S, A, n, n, "s42", va(n))
    LJ = A.label("wqjoin")
    A.wait_vm(A.m_wq); apoll_test(A, 30, 50)
    q0 = list(S.vq[:cfg.h_mid])
    with A.cold("s_cbranch_vccnz", LJ):
        set_flag(A, "s49")
        apoll(A, "s48", 30, 50, "pwq")
        for it in q0: it["fn"]()
    for _ in range(cfg.h_mid): S.pop_vm()
    set_flag(A, "s49", mark=m_h)
    A(f"{LJ}:")
    stamp(A, cfg, 4)
    for _ in range(cfg.h_gap): S.pop_vm()
    mp = apoll_async(A, "s86", 16, 16)
    VIS = (cfg.h_mid + cfg.h_gap) // 4
    S.flush()
    warm(A)
    stamp(A, cfg, 5)
    apoll_check(A, mp, "s86", 16, 16, "ph")
    stamp(A, cfg, 6)
    S.every = cfg.p1_every; S.log = []
    for s in range(40): tok_item(S, A, s, "s43", dl=96 * s)
    for n in range(PRE, 10): dma_items(S, A, n, n % 9, "s42", va(n), after=2 if n == 9 else 0, dl=32 * (16 * n - 4))
    for k in range(nld2): S.vm(("g", k), lambda k=k: gather_load(A, 640, nld2, k, vG2), dl=9999)
    S.take(cfg.p1_up)
    A("s_barrier")
    order = wq_order()
    rd = {}
    def wread(f):
        if f % 16 == 0 and f:
            m = f // 16
            if m >= VIS: A.wait_vm(S.need(("w", m, 3)))
            if m in (2, 6) or m >= VIS: A("s_barrier"); S.bar = m
        va_, im = lds_addr((f % 144) * 1024)
        A(f"ds_read_b128 {vr(WF+4*(f%4),4)}, {va_} offset:{im}")
        rd[f] = A.lg
    for f in range(4): wread(f)
    S.ops(f"""s_and_b32 s51, {sWV}, 1
    s_lshr_b32 s52, {sWV}, 1
    s_lshl_b32 s54, s51, 12
    s_lshl_b32 s55, s52, 11
    s_add_u32 s54, s54, s55
    v_add_u32 v10, s54, {vL16}
    v_xor_b32 v11, 0x800, v10
    s_lshr_b32 s54, s54, 2
    v_lshlrev_b32 v12, 3, {vL}
    v_add_u32 v12, s54, v12
    v_xor_b32 v13, 0x200, v12
    v_add_u32 v12, {L_Q + 8192}, v12
    v_add_u32 v13, {L_Q + 8192}, v13
    v_lshrrev_b32 v18, 5, {vL}
    s_lshl_b32 s54, s51, 10
    s_add_u32 s54, s54, {L_K0}
    v_lshl_add_u32 v14, v18, 9, s54
    s_lshl_b32 s54, s51, 9
    s_add_u32 s54, s54, {L_K0 + 2048}
    v_mov_b32 v15, s54
    v_and_b32 v19, 31, {vL}
    s_mov_b32 s50, {KVB}
    v_lshlrev_b32 v20, 3, v19
    v_mad_u32_u24 v8, v18, s50, v20
    v_mul_u32_u24 v21, 320, v18
    v_lshl_add_u32 v21, v19, 4, v21
    v_and_b32 v22, 27, v19
    v_cmp_eq_u32 vcc, 24, v22
    v_mov_b32 v22, {OOB}
    v_mov_b32 v23, 640
    v_cndmask_b32 v22, v22, v23, vcc
    v_cmp_gt_u32 vcc, 20, v19
    s_lshl_b32 s53, {sJ}, 1
    s_add_u32 s53, s53, s51
    v_cndmask_b32 v9, v22, v21, vcc
    s_mul_i32 s53, s53, {64*KVB}
    s_add_u32 s53, s53, {OFF_KV}
    s_mul_i32 s54, s52, {32*KVB}
    s_add_u32 s46, s53, s54
    s_mov_b32 s47, 0
    s_mov_b32 s44, s46
    s_add_u32 s45, s46, {KVB}
    s_lshl_b32 s52, s52, 9
    s_lshl_b32 s86, {sJ}, 10
    s_add_u32 s86, s86, s52
    s_and_b32 s52, {sRB}, 1
    s_lshl_b32 s52, s52, 8
    s_add_u32 s86, s86, s52
    v_cmp_gt_u32 vcc, 2, {vL}
    v_lshlrev_b32 v20, 8, {vL}
    v_mov_b32 v21, {OOB}
    v_cndmask_b32 v253, v21, v20, vcc
    v_add_u32 v254, {KVB}, {vL16}
    v_add_u32 v255, {KVB}, v9
    s_add_u32 s86, s86, {OFF_FKV}""", start=128)
    S.ops(f"""v_lshrrev_b32 v16, 5, {vL}
    v_and_b32 v17, 31, {vL}
    s_lshl_b32 s50, {sJ}, 7
    s_add_u32 s50, s50, {sT}
    s_mul_i32 s50, s50, {KVB}
    s_add_u32 s50, s50, {OFF_KV}
    s_add_u32 s51, s50, {64*KVB}
    s_mov_b32 s52, {64*KVB}
    s_mov_b32 s53, {fbits(QSCALE)}
    v_lshlrev_b32 v18, 3, v17
    v_mad_u32_u24 v20, v16, s52, v18
    s_lshl_b32 s54, {sWV}, 8
    s_add_u32 s54, s54, {L_Q + 8192}
    v_lshl_add_u32 v21, v16, 10, v18
    v_add_u32 v21, s54, v21
    s_lshl_b32 s54, {sWV}, 10
    s_add_u32 s54, s54, {L_Q}
    v_add_u32 v22, s54, {vL16}
    s_cmp_eq_u32 {sWV}, 0
    s_cselect_b32 s54, 0, 3072
    s_add_u32 s54, s54, {L_K0}
    v_add_u32 v19, s54, {vL16}
    s_mul_i32 s54, {sWV}, 2560
    s_add_u32 s54, s54, {L_VT}
    v_mul_u32_u24 v23, 80, v17
    v_lshl_add_u32 v23, v16, 3, v23
    v_add_u32 v23, s54, v23
    v_bfe_u32 v24, {vL}, 2, 2
    v_lshl_add_u32 v24, v16, 2, v24
    v_mul_u32_u24 v24, 80, v24
    v_add_u32 v24, s54, v24
    v_and_b32 v25, 1, {vL}
    v_lshlrev_b32 v25, 4, v25
    v_bfe_u32 v26, {vL}, 1, 1
    v_lshl_add_u32 v25, v26, 3, v25
    v_cmp_gt_u32 vcc, 16, v17
    v_add_u32 v26, 48, v25
    v_mul_u32_u24 v27, 320, v16
    v_cndmask_b32 v25, 32, v25, vcc
    v_cndmask_b32 v26, 40, v26, vcc
    v_add_u32 v25, v25, v24
    v_add_u32 v26, v26, v24
    v_lshl_add_u32 v27, v17, 4, v27
    v_add_u32 v28, 20, v16
    v_cmp_lt_u32 vcc, v17, v28
    v_mov_b32 v28, {OOB}
    v_mov_b32 v29, 0x3f803f80
    v_cndmask_b32 v27, v28, v27, vcc
    v_cmp_gt_u32 vcc, 20, v17
    s_lshl_b32 s55, {sJ}, 8
    s_add_u32 s55, s55, {sT}
    s_and_b32 s56, {sT}, 32
    s_mul_i32 s56, s56, 3
    s_add_u32 s55, s55, s56
    s_lshl_b32 s55, s55, 2
    s_add_u32 s55, s55, {OFF_FKV}""", start=256)
    E0 = 122 * 32
    mk = {}
    for hd in range(2):
        for d in range(4): S.ops(f"v_cvt_pk_bf16_f32 v{128+4*hd+d}, v{ACC+8*hd+2*d}, v{ACC+8*hd+1+2*d}", E0)
    for i in range(5):
        src = ACC + 16 + 4 + 4 * i
        for d in range(2): S.ops(f"v_cvt_pk_bf16_f32 v{138+2*i+d}, v{src+2*d}, v{src+2*d+1}", E0)
        S.op(f"ds_write_b64 v23, {vr(138+2*i,2)} offset:{16*i}", 6, E0)
    S.op(lambda: mk.__setitem__("vw", A.lg), 0, E0)
    for hd in range(2): S.ops(f"buffer_store_dwordx4 {vr(128+4*hd,4)}, {vL16}, {WS}, s{50+hd} offen sc1", E0)
    S.op(lambda: A.wait_lg(mk["vw"]), 4, E0)
    for hd in range(2):
        for kg in range(2):
            b = 148 + 8*hd + 4*kg
            for r_ in range(2): S.ops(f"ds_read_b64_tr_b16 {vr(b+2*r_,2)}, v{25+hd} offset:{(16*kg+8*r_)*80}", E0)
            S.op(lambda k=(hd, kg): mk.__setitem__(k, A.lg), 0, E0)
    for d in range(2): S.ops(f"v_cvt_pk_bf16_f32 v{136+d}, v{ACC+16+2*d}, v{ACC+17+2*d}", E0)
    S.ops(f"buffer_store_dwordx2 {vr(136,2)}, v20, {WS}, s50 offen offset:{KV_R} sc1", E0)
    for hd in range(2):
        for kg in range(2):
            b = 148 + 8*hd + 4*kg
            S.op(lambda k=(hd, kg): A.wait_lg(mk[k]), 4, E0)
            for d in range(4): S.ops(f"v_cndmask_b32 v{b+d}, v29, v{b+d}, vcc", E0)
            S.ops(f"buffer_store_dwordx4 {vr(b,4)}, v27, {WS}, s{50+hd} offen offset:{(KV_V0, KV_V1)[kg]} sc1", E0)
    for d in range(4): S.ops(f"v_mul_f32 v{ACC+40+d}, s53, v{ACC+40+d}", E0)
    for d in range(2): S.ops(f"v_cvt_pk_bf16_f32 v{30+d}, v{ACC+40+2*d}, v{ACC+41+2*d}", E0)
    S.op(f"ds_write_b64 v21, {vr(30,2)}", 6, E0)
    for hd in range(2): S.op(f"ds_write_b128 v19, {vr(128+4*hd,4)} offset:{1024*hd}", 8, E0)
    S.op(f"ds_write_b64 v19, {vr(136,2)} offset:2048", 6, E0)
    seen = set()
    FI = Fine(A, cfg, "p1"); FI()
    for f, (s, t) in enumerate(order):
        if s not in seen: A.wait(vm=S.need(("t", s)), lg=rd[f]); seen.add(s)
        else: A.wait_lg(rd[f])
        if f % 16 == 0: FI()
        d = vr(ACC + 16*t, 16)
        A(f"{MF32} {d}, {vr(WF+4*(f%4),4)}, {ar(4*s,4)}, {d if s else '0'}")
        if f + 4 < 160: wread(f + 4)
        if f == 121:
            while S.vq: S.pop_vm()
        S.gap(32 * f, cfg.p1_budget)
    FI(); S.flush(); FI.done()
    if cfg.verbose: print("p1 log", S.log, "\nforced", S.forced)
    stamp(A, cfg, 7)
    A.wait_vm(S.marks[("g", nld2 - 1)])
    gather_check(A, nld2, vG2)
    with A.cold("s_cbranch_vccnz"): gather_spin(A, 640, nld2, vG2)
    gather_write(A, nld2, vG2)
    for d in range(0, 16, 2): A(f"v_pk_mul_f32 {vr(ACC+48+d,2)}, {vr(ACC+48+d,2)}, s[52:53] op_sel:[0,1] op_sel_hi:[1,1]")
    for hd in range(2):
        for d in range(4): A(f"v_cvt_pk_bf16_f32 v{32+4*hd+d}, v{ACC+48+8*hd+2*d}, v{ACC+49+8*hd+2*d}")
        A(f"ds_write_b128 v22, {vr(32+4*hd,4)} offset:{4096*hd}")
    set_flag(A, "s55", voff="v253")
    A("s_waitcnt lgkmcnt(0)\ns_barrier")
    stamp(A, cfg, 8)

aO, aQ, aQR, aKV = 0, 64, 80, (84, 110, 136)
vS, vC, vP = (64, 96), (128, 160), 48
vKR, vV = "v8", "v9"
sK0, sK1, sKB, sFB, sIT = "s44", "s45", "s46", "s47", "s48"
def kvreg(b, what):
    o = {"k0": 0, "k1": 4, "kr": 8, "v00": 10, "v01": 14, "v10": 18, "v11": 22}[what]
    return ar(aKV[b] + o, 2 if what == "kr" else 4)
def kv_loads(A, b, konly=False):
    A(f"buffer_load_dwordx2 {kvreg(b,'kr')}, {vKR}, {WS}, {sK0} offen offset:{KV_R} sc1")
    A(f"buffer_load_dwordx4 {kvreg(b,'k0')}, {vL16}, {WS}, {sK0} offen sc1")
    if not konly:
        A(f"buffer_load_dwordx4 {kvreg(b,'v00')}, {vV}, {WS}, {sK0} offen offset:{KV_V0} sc1")
        A(f"buffer_load_dwordx4 {kvreg(b,'v01')}, {vV}, {WS}, {sK0} offen offset:{KV_V1} sc1")
    A(f"buffer_load_dwordx4 {kvreg(b,'k1')}, v254, {WS}, {sK0} offen sc1")
    if not konly:
        A(f"buffer_load_dwordx4 {kvreg(b,'v10')}, v255, {WS}, {sK0} offen offset:{KV_V0} sc1")
        A(f"buffer_load_dwordx4 {kvreg(b,'v11')}, v255, {WS}, {sK0} offen offset:{KV_V1} sc1")
    A(f"s_add_u32 {sK0}, {sK0}, {2*KVB}")
def qk_rem(b, kt, qp, c):
    return f"{MF2B} {vr(vS[qp],32)}, {kvreg(b,'kr')}, {ar(aQR+2*qp,2)}, {c} cbsz:1 abid:{kt}"
def qk_main(b, kt, qp, t):
    d = vr(vS[qp] + 16*t, 16)
    return f"{MF32} {d}, {kvreg(b,'k%d'%kt)}, {ar(aQ+4*(2*qp+t),4)}, {d}"
def pv(b, kt, qp, g, first=False):
    d = ar(aO + 16*(2*qp + (g >> 1)), 16)
    return f"{MF32} {d}, {kvreg(b,'v%d%d'%(kt, g & 1))}, {vr(vP+4*g,4)}, {'0' if first else d}"

def att_stream(A, kvm, hooks, FI):
    dec = lambda n: ((n >> 2) % 3, (n >> 1) & 1, n & 1)
    for n in range(64):
        b, kt, qp = dec(n); it = n >> 2
        if n in (0, 4, 8, 16, 20, 24, 32, 40, 48, 56, 60): FI()
        for g in range(4):
            s0 = vS[qp] + 8*g
            E = [f"v_exp_f32 v{s0+i}, v{s0+i}" for i in range(8)]
            C = [f"v_cvt_pk_bf16_f32 v{vP+4*g+i}, v{s0+2*i}, v{s0+2*i+1}" for i in range(4)]
            if g == 0: prev = pv(*dec(n - 1), 3) if n else None
            else: prev = pv(b, kt, qp, g - 1, n < 2 and g != 2)
            nx = dec(n + 1) if n < 63 else None
            k = 3 if g == 1 else 2
            A("\n".join(E[0:k]))
            if prev: A(prev)
            if g == 0:
                if n % 4 == 0 and it + 2 < 16: kv_loads(A, (it + 2) % 3); kvm[it + 2] = A.vm
                for h in hooks.get(n, []): h()
                if n % 4 == 3 and nx: A.wait_vm(kvm[it + 1])
            A("\n".join(E[k:5]))
            if nx:
                if g == 0: A(qk_rem(*nx, vr(vC[nx[2]], 32)))
                elif g >= 2: A(qk_main(*nx, g - 2))
            A(E[5])
            if g == 1:
                for h in hooks.get((n, 1), []): h()
            A("\n".join(E[6:8] + C))
    A("s_nop 1")
    A(pv(*dec(63), 3))
    FI(); FI.done()

def att_slot(A, n):
    b, kt, qp = n >> 2, (n >> 1) & 1, n & 1
    p = (n - 1) % 8; pb, pkt, pqp = p >> 2, (p >> 1) & 1, p & 1
    x = (n + 1) % 8; xb, xkt, xqp = x >> 2, (x >> 1) & 1, x & 1
    for g in range(4):
        s0 = vS[qp] + 8*g
        E = [f"v_exp_f32 v{s0+i}, v{s0+i}" for i in range(8)]
        C = [f"v_cvt_pk_bf16_f32 v{vP+4*g+i}, v{s0+2*i}, v{s0+2*i+1}" for i in range(4)]
        prev = pv(pb, pkt, pqp, 3) if g == 0 else pv(b, kt, qp, g - 1)
        if g == 0:
            A("\n".join(E[0:2])); A(prev)
            if n % 4 == 0: kv_loads(A, pb)
            if n % 4 == 3: A("s_waitcnt vmcnt(0)")
            A("\n".join(E[2:5])); A(qk_rem(xb, xkt, xqp, vr(vC[xqp], 32)))
            A("\n".join(E[5:8] + C))
        elif g == 1:
            A("\n".join(E[0:3])); A(prev)
            if n == 7: A(f"s_sub_u32 {sIT}, {sIT}, 1\ns_cmp_lg_u32 {sIT}, 0")
            A("\n".join(E[3:8] + C))
        else:
            A("\n".join(E[0:2])); A(prev)
            A("\n".join(E[2:5])); A(qk_main(xb, xkt, xqp, g - 2))
            A("\n".join(E[5:8] + C))


T3, T4, T5, TEND = 0, 7, 22, 37
sR3, sR4, sR5 = "s42", "s43", "s49"
vX1 = 232
def ring_items(S, A, n, after=0, dl=None):
    sr = sR3 if n < T4 else sR4 if n < T5 else sR5
    dma_items(S, A, n, n % 9, sr, (lambda t: "v15") if n == T4 - 1 else (lambda t: vL16), after, dl)
def ring_addr(n0, f): return lds_addr(((n0 * 16 + f) % 144) * 1024)
RS = None

vXR, vCS = 192, 204
TA = 216
def p2(A, cfg):
    global RS
    LMG = A.label("attmerge"); LF = A.label("attfb")
    A(f"""ds_read_b64 v[52:53], v15
    ds_read_b64 {ar(aQR,2)}, v12
    ds_read_b64 {ar(aQR+2,2)}, v13
    ds_read_b128 v[48:51], v14
    ds_read_b128 {ar(aQ,4)}, v10 offset:{L_Q}
    ds_read_b128 {ar(aQ+4,4)}, v10 offset:{L_Q+1024}
    ds_read_b128 {ar(aQ+8,4)}, v11 offset:{L_Q}
    ds_read_b128 {ar(aQ+12,4)}, v11 offset:{L_Q+1024}""")
    mp = apoll_async(A, "s86", 32, 16)
    A("s_waitcnt lgkmcnt(0)")
    for d in (4, 5, 0, 1, 2, 3): A(f"v_xor_b32 v{48+d}, 0x80008000, v{48+d}")
    for qp in range(2): A(f"{MF2B} {vr(vC[qp],32)}, v[52:53], {ar(aQR+2*qp,2)}, 0")
    A(f"""v_and_b32 v19, 31, {vL}
    s_lshl_b32 s51, {sCB}, 7
    s_add_u32 s51, s51, {OFF_FWO}
    s_lshl_b32 s52, {sJ}, 7
    s_add_u32 s52, s52, {OFF_FWG}
    v_min_u32 v13, 19, v19
    v_min_u32 v14, 29, v19
    v_lshl_add_u32 v13, v13, 2, s51
    v_lshl_add_u32 v14, v14, 2, s52
    v_cmp_gt_u32 vcc, 32, {vL}
    s_lshl_b32 s51, {sCB}, 8
    s_add_u32 s51, s51, {OFF_FWD}
    v_cndmask_b32 v13, v14, v13, vcc
    v_min_u32 v14, 47, {vL}
    v_lshl_add_u32 v14, v14, 2, s51
    s_mul_i32 {sR3}, {sCB}, 102400
    s_add_u32 {sR3}, {sR3}, {sWB}
    s_add_u32 {sR3}, {sR3}, {OFF_WOF - 16384}""")
    for qp in range(2):
        for t in range(2):
            d = vr(vC[qp] + 16*t, 16)
            A(f"{MF32} {d}, v[48:51], {ar(aQ+4*(2*qp+t),4)}, {d}")
    A(f"""s_mul_i32 {sR4}, {sJ}, 245760
    s_add_u32 {sR4}, {sR4}, {sWB}
    s_add_u32 {sR4}, {sR4}, {OFF_WGUF - 16384}
    s_mul_i32 {sR5}, {sCB}, 245760
    s_add_u32 {sR5}, {sR5}, {sWB}
    s_add_u32 {sR5}, {sR5}, {OFF_WDF - 16384}
    s_cmp_eq_u32 {sWV}, 0
    s_cselect_b32 s53, 0, {OOB}
    v_or_b32 v15, s53, {vL16}""")
    warm(A)
    stamp(A, cfg, 9)
    apoll_check(A, mp, "s86", 32, 16, "pkv")
    stamp(A, cfg, 10)
    kvm = {}
    kv_loads(A, 0); kvm[0] = A.vm
    side_setup(A)
    kv_loads(A, 1); kvm[1] = A.vm
    A("s_barrier")
    A.wait_vm(kvm[0])
    A(qk_rem(0, 0, 0, vr(vC[0], 32)))
    tile_addr(A)
    A.nop(2)
    A(qk_main(0, 0, 0, 0)); A(qk_main(0, 0, 0, 1))
    A(f"""s_mul_i32 s84, {sJ}, 6
    s_add_u32 s84, s84, {sWV}
    s_lshl_b32 s84, s84, 11
    s_add_u32 s84, s84, {OFF_CSB}
    s_and_b32 s85, {sWV}, 1
    s_sub_u32 s85, s85, {sWV}
    s_add_u32 s85, s85, 4
    s_lshl_b32 s85, s85, 11
    s_add_u32 s85, s85, s84
    v_mul_u32_u24 v20, 6554, {vL}
    v_lshrrev_b32 v20, 16, v20
    v_mul_u32_u24 v20, 1120, v20
    v_add_u32 v20, v20, {vL16}
    v_cmp_gt_u32 vcc, 60, {vL}
    v_mul_u32_u24 v21, 43, v{TA+4}
    v_lshrrev_b32 v21, 8, v21
    v_cndmask_b32 v229, v18, v20, vcc
    v_cmp_gt_u32 vcc, 40, {vL}
    v_mul_u32_u24 v22, 160, v{TA+4}
    v_lshl_add_u32 v22, v21, 6, v22
    v_cndmask_b32 v230, v18, v20, vcc
    v_add_u32 v22, {sSL}, v22
    v_lshl_add_u32 v231, v{TA+5}, 4, v22
    v_lshl_add_u32 v12, v{TA+5}, 3, v22""")
    stamp(A, cfg, 11)
    RS = S = Sched(A)
    for n in range(T4): ring_items(S, A, n)
    hooks = {}; mk = {}
    def at(n, f): hooks.setdefault(n, []).append(f)
    for m in range(8): at(4 * (m // 2), lambda m=m: side_dma(A, m))
    at(12, lambda: mk.__setitem__("sd", A.vm))
    P = cfg.a_proc
    def proc(): A.wait_vm(mk["sd"]); side_reads(A, range(4))
    at(P - 1, proc)
    at(P, lambda: side_reads(A, range(4, 8)))
    at(P + 1, lambda: A("s_waitcnt lgkmcnt(0)"))
    for f in range(8):
        at(P + 1 + f // 4, lambda f=f: side_store(A, f))
        at((P + 1 + f, 1), lambda f=f: side_mfma(A, f))
    def xdma():
        for k in range(3):
            A(f"s_add_u32 m0, {sSL}, {1024*k}")
            A(f"s_add_u32 s50, s82, {6*1280*k}")
            A(f"buffer_load_dwordx4 v{229 if k < 2 else 230}, {XS}, s50 offen lds")
        mk["x"] = A.vm
    at(P + 4, xdma)
    def csb(): A(f"buffer_store_dwordx2 v[32:33], {vT2}, {WS}, {sSC} offen sc1"); mk["ss"] = A.vm
    at(P + 10, csb)
    def flag():
        set_flag(A, sSF, mark=mk["ss"])
        A(f"""ds_read_b128 {vr(vXR,4)}, v231
        ds_read_b128 {vr(vXR+4,4)}, v231 offset:64
        ds_read_b64 {vr(vXR+8,2)}, v12 offset:128""")
    at(P + 15, flag)
    at(P + 16, lambda: A("s_waitcnt lgkmcnt(0)"))
    def fl():
        A(f"buffer_load_dword v10, v13, {WS}, 0 offen sc1\nbuffer_load_dword v11, v14, {WS}, 0 offen sc1"); mk["fl"] = A.vm
    at(cfg.a_chk - 4, fl)
    def chk():
        A.wait_vm(mk["fl"])
        A(f"""v_cmp_ne_u32 vcc, {sTAG}, v10
        v_cmp_ne_u32 s[60:61], {sTAG}, v11
        s_or_b64 vcc, vcc, s[60:61]""")
        with A.cold("s_cbranch_vccnz"): poll(A, [("v13", "0", 0), ("v14", "0", 0)], 10, "pside")
        for k in range(2):
            A(f"buffer_load_dwordx4 {vr(vCS+6*k,4)}, v{TA+6}, {WS}, s{84+k} offen sc1")
            A(f"buffer_load_dwordx2 {vr(vCS+6*k+4,2)}, v{TA+7}, {WS}, s{84+k} offen offset:16 sc1")
    at(cfg.a_chk, chk)
    for n in range(cfg.a_ring):
        at(cfg.a_chk + 2 + 2*n, lambda: [S.pop_vm() for _ in range(4)])
    att_stream(A, kvm, hooks, Fine(A, cfg, 'p2'))
    stamp(A, cfg, 12)
    A(f"{LMG}:")
    A(f"""s_lshl_b32 s50, {sWV}, 13
    s_add_u32 s50, s50, {L_MRG}
    v_add_u32 v18, s50, {vL16}
    s_xor_b32 s51, s50, {2 << 13}
    s_lshl_b32 s52, {sWV}, 2
    s_add_u32 s52, s52, {L_FLAG}
    v_mov_b32 v20, s52""")
    for q in range(4): A(f"ds_write_b128 v18, {ar(aO+32+4*q,4)} offset:{1024*q}")
    A(f"""v_accvgpr_read_b32 v76, a{aO+12}
    v_accvgpr_read_b32 v92, a{aO+16+12}
    v_accvgpr_read_b32 v22, a{aO+32+12}
    s_mov_b32 s53, {fbits(2.0**60) if not cfg.force_fallback else fbits(1e-30)}""")
    for q in range(4): A(f"ds_write_b128 v18, {ar(aO+48+4*q,4)} offset:{4096+1024*q}")
    A(f"""v_accvgpr_read_b32 v23, a{aO+48+12}
    v_cmp_nge_f32 vcc, s53, v76
    v_cmp_nge_f32 s[60:61], s53, v92
    s_or_b64 vcc, vcc, s[60:61]
    v_cmp_nge_f32 s[60:61], s53, v22
    s_or_b64 vcc, vcc, s[60:61]
    v_cmp_nge_f32 s[60:61], s53, v23
    s_or_b64 vcc, vcc, s[60:61]
    s_cselect_b32 s54, 1, 0
    v_mov_b32 v22, s54
    ds_write_b32 v20, v22
    s_xor_b32 s51, {sWV}, 2
    s_lshl_b32 s51, s51, 13
    s_add_u32 s51, s51, {L_MRG}
    v_add_u32 v19, s51, {vL16}
    v_mov_b32 v21, {L_FLAG}""")
    for d in range(12): A(f"v_accvgpr_read_b32 v{64+d}, a{aO+d}")
    for d in range(12): A(f"v_accvgpr_read_b32 v{80+d}, a{aO+16+d}")
    A(f"""s_waitcnt lgkmcnt(0)
    s_barrier
    ds_read_b128 v[24:27], v21""")
    mf = A.lg
    mk = []
    for t in range(2):
        for q in range(4): A(f"ds_read_b128 {vr(96+16*t+4*q,4)}, v19 offset:{4096*t+1024*q}")
        mk.append(A.lg)
    A(f"""v_bfe_u32 v28, {vL}, 4, 1
    v_mul_u32_u24 v28, 20480, v28
    v_and_b32 v29, 15, {vL}
    v_lshl_add_u32 v28, v29, 4, v28
    v_lshrrev_b32 v29, 5, {vL}
    v_cmp_eq_u32 vcc, 0, v29
    v_lshl_add_u32 v29, v29, 8, v28
    v_mov_b32 v30, {OOB}
    s_lshr_b32 s52, {sWV}, 1
    v_cndmask_b32 v28, v30, v28, vcc
    s_lshl_b32 s50, {sRB}, 1
    s_add_u32 s55, s50, s52
    s_mul_i32 s50, s55, {4*20480}
    s_mul_i32 s51, {sJ}, 1280
    s_add_u32 s50, s50, s51
    s_add_u32 s50, s50, {OFF_O}
    s_and_b32 s56, {sWV}, 1
    s_lshl_b32 s51, s56, 3
    s_add_u32 s51, s51, s50
    s_mul_i32 s52, s56, 768
    s_add_u32 s50, s50, s52""")
    A.wait_lg(mf)
    A(f"""v_or3_b32 v24, v24, v25, v26
    v_or_b32 v24, v24, v27
    s_nop 0
    v_readfirstlane_b32 s54, v24
    s_nop 0
    s_cmp_gt_u32 s54, {sFB}
    s_cbranch_scc1 {LF}""")
    for t in range(2):
        o, r_ = 64 + 16*t, 96 + 16*t
        A.wait_lg(mk[t])
        A(f"v_add_f32 v{o+12}, v{o+12}, v{r_+12}\nv_rcp_f32 v{o+12}, v{o+12}")
        for d in range(0, 12, 2): A(f"v_pk_add_f32 {vr(o+d,2)}, {vr(o+d,2)}, {vr(r_+d,2)}")
        for d in range(0, 12, 2): A(f"v_pk_mul_f32 {vr(o+d,2)}, {vr(o+d,2)}, {vr(o+12,2)} op_sel_hi:[1,0]")
        for d in range(6): A(f"v_cvt_pk_bf16_f32 v{32+8*t+d}, v{o+2*d}, v{o+2*d+1}")
        A(f"buffer_store_dwordx4 {vr(32+8*t,4)}, v29, {WS}, s50 offen sc1")
        A(f"buffer_store_dwordx2 {vr(36+8*t,2)}, v28, {WS}, s51 offen offset:512 sc1")
        if t == 0: A(f"s_add_u32 s50, s50, {2*20480}\ns_add_u32 s51, s51, {2*20480}")
    m_o = A.vm
    A(f"""s_lshl_b32 s50, s55, 9
    s_lshl_b32 s51, {sJ}, 1
    s_add_u32 s51, s51, s56
    s_lshl_b32 s51, s51, 2
    s_add_u32 s50, s50, s51
    s_add_u32 s50, s50, {OFF_FO}
    v_cmp_gt_u32 vcc, 2, {vL}
    v_lshlrev_b32 v31, 8, {vL}""")
    A("s_nop 0\nv_cndmask_b32 v31, v30, v31, vcc")
    for _ in range(min(cfg.o_mid, len(S.vq))): S.pop_vm()
    p3_setup(A)
    set_flag(A, "s50", mark=m_o, voff="v31")
    stamp(A, cfg, 13)
    A.tailcode = lambda: fallback(A, LF, LMG)

def fallback(A, LF, LMG):
    newpath(A)
    LL = A.label("attloop")
    A(f"{LF}:")
    LM = A.label("attmax")
    A(f"""s_waitcnt vmcnt(0) lgkmcnt(0)
    s_mov_b32 {sFB}, 1
    s_mov_b32 {sIT}, 16
    s_mov_b32 {sK0}, {sKB}
    s_add_u32 {sK1}, {sKB}, {KVB}""")
    for t in range(4): A(f"v_mov_b32 v{32+t}, 0xff800000")
    A(f"{LM}:")
    t0 = A.loop_begin()
    kv_loads(A, 0, True)
    A("s_waitcnt vmcnt(0)")
    for kt in range(2):
        for qp in range(2): A(qk_rem(0, kt, qp, "0"))
        A.nop(18)
        for qp in range(2):
            for t in range(2): A(qk_main(0, kt, qp, t))
        A.nop(12)
        for t in range(4):
            for d in range(0, 16, 2): A(f"v_max3_f32 v{32+t}, v{64+16*t+d}, v{65+16*t+d}, v{32+t}")
    A(f"s_sub_u32 {sIT}, {sIT}, 1\ns_cmp_lg_u32 {sIT}, 0\ns_cbranch_scc1 {LM}")
    A.loop_end(t0)
    for t in range(4): A(f"v_mov_b32 v{36+t}, v{32+t}")
    A("s_nop 1")
    for t in range(4): A(f"v_permlane32_swap_b32 v{32+t}, v{36+t}")
    for t in range(4): A(f"v_max_f32 v{32+t}, v{32+t}, v{36+t}")
    A(f"""s_barrier
    ds_write_b128 v18, v[32:35]
    s_waitcnt lgkmcnt(0)
    s_barrier
    ds_read_b128 v[36:39], v19
    s_mov_b32 {sK0}, {sKB}
    s_add_u32 {sK1}, {sKB}, {KVB}""")
    kv_loads(A, 0)
    A("s_waitcnt vmcnt(0) lgkmcnt(0)\ns_barrier")
    for t in range(4): A(f"v_max_f32 v{32+t}, v{32+t}, v{36+(t^2)}")
    for t in range(4):
        for d in range(16): A(f"v_sub_f32 v{vC[0]+16*t+d}, 0, v{32+t}")
    for d in range(4): A(f"v_mov_b32 v{vP+12+d}, 0")
    for d in range(4): A(f"v_accvgpr_write_b32 a{aKV[1]+22+d}, 0")
    A(f"s_mov_b32 {sIT}, 8\ns_nop 0")
    for t in range(4): A(f"{MF32} {ar(aO+16*t,16)}, {vr(vP+12,4)}, {vr(vP+12,4)}, 0")
    A(qk_rem(0, 0, 0, vr(vC[0], 32)))
    A.nop(18)
    A(qk_main(0, 0, 0, 0)); A(qk_main(0, 0, 0, 1))
    A.nop(11)
    A(f"{LL}:")
    t0 = A.loop_begin()
    for n in range(8): att_slot(A, n)
    A(f"s_cbranch_scc1 {LL}")
    A.loop_end(t0)
    A("s_nop 0")
    A(pv(1, 1, 1, 3))
    A.nop(20)
    A(f"s_branch {LMG}")

def gemm16(A, S, n0, KS, visible, FI, areg=lambda s: 4*s, hook=None, key="t", t0=0):
    WF, ACC = 24, 64
    rd = {}
    def wread(f):
        if f % 16 == 0 and f:
            m = n0 + f // 16
            if m > visible: A.wait_vm(S.need(("w", m, 3)))
            if m > visible or any(it["after"] == m for it in S.vq): A("s_barrier"); S.bar = m
        va, im = ring_addr(n0, f)
        A(f"ds_read_b128 {vr(WF+4*(f%10),4)}, {va} offset:{im}")
        rd[f] = A.lg
    for f in range(10): wread(f)
    FI()
    for s in range(KS):
        if s % (KS // 10 + (KS % 10 > 0)) == 1: FI()
        if hook: hook(s)
        for t in range(5):
            f = 5*s + t
            if t == 0: A.wait(vm=S.need((key, s)), lg=rd[f+1])
            elif t == 2: A.wait_lg(rd[f+2])
            d = vr(ACC+4*t, 4)
            A(f"{MF16} {d}, {vr(WF+4*(f%10),4)}, {ar(areg(s),4)}, {d if s else '0'}")
            if f + 10 < 5*KS: wread(f + 10)
            S.gap(t0 + 16 * f, 0)
    FI(); FI.done()

def tile_addr(A):
    A(f"""v_and_b32 v{TA+4}, 15, {vL}
    v_lshrrev_b32 v{TA+5}, 4, {vL}
    v_mul_u32_u24 v{TA}, 1280, v{TA+4}
    v_lshl_add_u32 v{TA+1}, v{TA+5}, 3, v{TA}
    v_lshl_add_u32 v{TA}, v{TA+5}, 4, v{TA}
    s_mul_i32 s83, {sCB}, 160
    s_mul_i32 s82, {sTT}, 20480
    s_add_u32 s82, s82, s83
    s_add_u32 s83, s83, {L_MOD2}
    v_lshl_add_u32 v{TA+2}, v{TA+5}, 4, s83
    v_lshl_add_u32 v{TA+3}, v{TA+5}, 3, s83
    v_cmp_gt_u32 vcc, 32, {vL}
    v_lshrrev_b32 v18, 5, {vL}
    v_lshlrev_b32 v{TA+6}, 6, v19
    v_lshl_add_u32 v{TA+6}, v18, 5, v{TA+6}
    v_mov_b32 v18, {OOB}
    v_cndmask_b32 v{TA+7}, v18, v{TA+6}, vcc""")
def vec_read(A, dst, vec):
    A(f"""ds_read_b128 {vr(dst,4)}, v{TA+2} offset:{1280*vec}
    ds_read_b128 {vr(dst+4,4)}, v{TA+2} offset:{1280*vec+64}
    ds_read_b64 {vr(dst+8,2)}, v{TA+3} offset:{1280*vec+128}""")

def p3_setup(A):
    vec_read(A, 108, 0); vec_read(A, 120, 2)
    A(f"""s_lshr_b32 s48, {sTT}, 1
    s_lshl_b32 s86, s48, 8
    s_add_u32 s86, s86, {OFF_FO}
    s_mul_i32 s51, {sTT}, 20480
    s_add_u32 s51, s51, {OFF_O - 4096}
    v_lshlrev_b32 v8, 4, v{TA+4}
    v_lshl_add_u32 v9, v{TA+5}, 9, v8
    v_and_b32 v10, 1, v{TA+5}
    v_lshl_add_u32 v8, v10, 3, v8
    v_lshrrev_b32 v10, 1, v{TA+5}
    v_lshl_add_u32 v8, v10, 9, v8
    v_add_u32 v8, 0x1000, v8
    v_cmp_eq_u32 vcc, 0, v{TA+5}
    v_lshlrev_b32 v10, 6, v{TA+4}
    v_mov_b32 v11, {OOB}
    s_mul_i32 s52, s48, 40960
    v_cndmask_b32 v10, v11, v10, vcc
    s_and_b32 s45, {sTT}, 1
    s_lshl_b32 s53, s45, 8
    s_add_u32 s52, s52, s53
    s_mul_i32 s53, {sCB}, 5120
    s_add_u32 s52, s52, s53
    s_add_u32 s52, s52, {OFF_X1S}
    s_lshl_b32 s53, {sTT}, 10
    s_lshl_b32 s54, {sCB}, 3
    s_add_u32 s53, s53, s54
    s_add_u32 s53, s53, {OFF_ST}
    s_waitcnt lgkmcnt(0)""")
    for d in range(10):
        unpack(A, 136+2*d, 137+2*d, 108+d)
        unpack(A, 160+2*d, 161+2*d, 120+d)

def ext_build(A):
    A(f"""s_lshl_b32 s50, {sWV}, 10
    s_add_u32 s50, s50, {L_EXT}
    v_add_u32 v12, s50, {vL16}
    s_and_b32 s50, {sWV}, 1
    s_lshl_b32 s50, s50, 10
    s_add_u32 s50, s50, {L_EXT + 4096}
    v_add_u32 v13, s50, {vL16}""")
    for k in range(2):
        b, e = vCS + 6*k, 96 + 4*k
        A(f"""v_pk_add_f32 {vr(b,2)}, {vr(b,2)}, {vr(b+2,2)}
        v_pk_add_f32 {vr(b,2)}, {vr(b,2)}, {vr(b+4,2)}
        v_cvt_pk_bf16_f32 v{e}, v{b}, v{b}
        v_lshlrev_b32 v{b+2}, 16, v{e}
        v_sub_f32 v{b+2}, v{b}, v{b+2}
        v_cvt_pk_bf16_f32 v{e+1}, v{b+2}, v{b+1}
        v_and_b32 v{b+3}, 0xffff0000, v{e+1}
        v_sub_f32 v{b+3}, v{b+1}, v{b+3}
        v_cvt_pk_bf16_f32 v{e+2}, v{b+1}, v{b+3}
        v_mov_b32 v{e+3}, 0
        ds_write_b128 v{12+k}, {vr(e,4)}""")

def p3(A, cfg):
    S = RS
    S.flush()
    m_wo = A.vm
    ext_build(A)
    for d in range(10): unpack(A, vX1+2*d, vX1+2*d+1, vXR+d)
    late = cfg.a_ring < T4
    if not late: A("s_waitcnt lgkmcnt(0)\ns_barrier")
    mp = apoll_async(A, "s86", 32, 23)
    if not late:
        for n in (T4, T4 + 1): ring_items(S, A, n)
        S.flush()
    warm(A)
    stamp(A, cfg, 14)
    apoll_check(A, mp, "s86", 32, 23, "po")
    stamp(A, cfg, 15)
    S.every = cfg.p3_every; S.last = -999; S.bar = 0
    for s in range(20): tok_item(S, A, s, "s51")
    for _ in range(cfg.p3_up): S.pop_vm()
    if late:
        A("s_waitcnt lgkmcnt(0)\ns_barrier")
        for n in (T4, T4 + 1): ring_items(S, A, n)
    gemm16(A, S, T3, 20, T4 - 1, Fine(A, cfg, 'p3'))
    stamp(A, cfg, 16)
    A.nop(6)
    for d in range(0, 20, 2): A(f"v_pk_fma_f32 {vr(vX1+d,2)}, {vr(64+d,2)}, {vr(136+d,2)}, {vr(vX1+d,2)}")
    for d in range(0, 20, 2): A(f"v_pk_mul_f32 {vr(160+d,2)}, {vr(160+d,2)}, {vr(vX1+d,2)}")
    for d in range(10): A(f"v_cvt_pk_bf16_f32 v{100+d}, v{160+2*d}, v{161+2*d}")
    A(f"""buffer_store_dwordx4 v[100:103], v9, {WS}, s52 offen sc1
    buffer_store_dwordx4 v[104:107], v9, {WS}, s52 offen offset:2048 sc1
    buffer_store_dwordx2 v[108:109], v8, {WS}, s52 offen sc1
    v_pk_add_f32 v[112:113], {vr(vX1,2)}, {vr(vX1+2,2)}
    v_pk_mul_f32 v[114:115], {vr(vX1,2)}, {vr(vX1,2)}""")
    for d in range(2, 20, 2):
        if d > 2: A(f"v_pk_add_f32 v[112:113], v[112:113], {vr(vX1+d,2)}")
        A(f"v_pk_fma_f32 v[114:115], {vr(vX1+d,2)}, {vr(vX1+d,2)}, v[114:115]")
    A("""v_add_f32 v112, v112, v113
    v_add_f32 v113, v114, v115
    v_mov_b32 v114, v112
    v_mov_b32 v115, v113
    s_nop 0
    v_permlane16_swap_b32 v112, v114
    v_permlane16_swap_b32 v113, v115
    v_pk_add_f32 v[112:113], v[112:113], v[114:115]
    v_mov_b32 v114, v112
    v_mov_b32 v115, v113
    s_nop 0
    v_permlane32_swap_b32 v112, v114
    v_permlane32_swap_b32 v113, v115
    v_pk_add_f32 v[112:113], v[112:113], v[114:115]""")
    A(f"buffer_store_dwordx2 v[112:113], v10, {WS}, s53 offen sc1")
    m_x = A.vm
    A(f"""s_lshl_b32 s50, s48, 8
    s_lshl_b32 s51, {sCB}, 1
    s_add_u32 s51, s51, s45
    s_lshl_b32 s51, s51, 2
    s_add_u32 s50, s50, s51
    s_add_u32 s50, s50, {OFF_FX1}
    s_barrier""")
    S.flush()
    for n in range(T4 + 2, T4 + 2 + cfg.x_turns): ring_items(S, A, n)
    for _ in range(cfg.x_mid): S.pop_vm()
    set_flag(A, "s50", mark=m_x)
    stamp(A, cfg, 17)

K0, K1, SG = 190, 192, 194
p5reg = lambda s: 160 + 4*s if s < 24 else 4*(s - 24)
TP5 = 240 * 32 + 640
def hh_sync(S, A, cfg, p, mk, t_flag, t_chk):
    def fl():
        assert p in mk, "stores not issued yet"
        set_flag(A, "s55", mark=mk[p]); A("s_add_u32 s55, s55, 16384"); mk[("f", p)] = 1
    S.vm(("f", p), fl, start=t_flag, dl=-2, free=True)
    def po():
        if p: A("s_add_u32 s57, s57, 16384")
        apoll_async(A, "s57", 16, 21 + p)
    S.vm(("p", p), po, start=t_chk - cfg.hh_rt, dl=-1, free=True)
    def chk():
        assert ("f", p) in mk
        assert ("p", p + 1) not in S.marks
        apoll_check(A, S.need(("p", p)), "s57", 16, 21 + p, "phh")
    S.vm(("u", "c", p), chk, start=t_chk, dl=-1, free=True)
    for s in range(16*p, 16*p + 16): tok_item(S, A, s, "s59", p5reg(s), "u", dl=TP5 + 80 * s, start=32 * (162 + 2 * (s - 24)) if s >= 24 else -1)
def ring_dl(n): return 32 * (16 * (n - T4) - 4) if n < T5 else TP5 + 16 * (16 * (n - T5) - 10)

def p4(A, cfg):
    WF, ACC = 32, 64
    S = RS
    for _ in range(cfg.x_gap): S.pop_vm()
    A(f"""s_lshl_b32 s50, {sT}, 8
    s_add_u32 s50, s50, {OFF_FX1}""")
    mp = apoll_async(A, "s50", 16, 23)
    S.flush()
    A(f"""s_lshl_b32 s51, {sT}, 11
    s_add_u32 s51, s51, {OFF_ST}
    s_mul_i32 s52, {sT}, 40960
    s_add_u32 s52, s52, {OFF_X1S - 4096}""")
    va, im = lds_addr(L_EXT)
    for nt in range(6): A(f"ds_read_b128 {vr(160+4*nt,4)}, {va} offset:{im+1024*nt}")
    warm(A)
    apoll_check(A, mp, "s50", 16, 23, "px1")
    stamp(A, cfg, 18)
    vis = T4 + 1 + (cfg.x_mid + cfg.x_gap) // 4
    S.minlead = cfg.p4_lead; S.every = cfg.p4_every; S.last = -999; S.bar = T4 + 1; S.log = []; S.forced = []
    S.marks = {k: v for k, v in S.marks.items() if k[0] == "w"}
    for s in range(40): tok_item(S, A, s, "s52", dl=64 * s)
    for k in range(2): S.vm(("s", k), lambda k=k: A(f"buffer_load_dwordx4 {vr(200+4*k,4)}, v{TA+6}, {WS}, s51 offen offset:{16*k} sc1"), dl=32 * cfg.f_stat)
    mk = A.hh = {}
    for n in range(T4 + 2 + cfg.x_turns, TEND): ring_items(S, A, n, n - 7, ring_dl(n))
    hh_sync(S, A, cfg, 0, mk, cfg.t_flag0, cfg.t_chk0)
    hh_sync(S, A, cfg, 1, mk, cfg.t_flag1, cfg.t_chk1)
    hh_sync(S, A, cfg, 2, mk, cfg.t_flag2, cfg.t_chk2)
    S.take(cfg.p4_up)
    A("s_barrier")
    order = wgu_order()
    rd = {}
    def wread(f):
        if f % 16 == 0 and f:
            m = T4 + f // 16
            if m > vis: A.wait_vm(S.need(("w", m, 3)))
            if m >= T4 + 2: A("s_barrier"); S.bar = m
        va, im = ring_addr(T4, f)
        A(f"ds_read_b128 {vr(WF+4*(f%4),4)}, {va} offset:{im}")
        rd[f] = A.lg
    for f in range(4): wread(f)
    S.ops(f"""v_bfe_u32 v8, {vL}, 4, 1
    v_mul_u32_u24 v8, 49152, v8
    v_lshl_add_u32 v8, v{TA+4}, 4, v8
    v_lshrrev_b32 v9, 5, {vL}
    v_lshl_add_u32 v8, v9, 8, v8
    s_mul_i32 s53, {sT}, {2*49152}
    s_add_u32 s53, s53, {OFF_HH}
    s_lshl_b32 s55, {sJ}, 10
    s_add_u32 s53, s53, s55
    s_lshl_b32 s55, {sT}, 8
    s_lshl_b32 s56, {sJ}, 2
    s_add_u32 s55, s55, s56
    s_add_u32 s55, s55, {OFF_FHH}
    s_lshl_b32 s57, s48, 8
    s_add_u32 s57, s57, {OFF_FHH}
    s_mul_i32 s59, {sTT}, 49152
    s_add_u32 s59, s59, {OFF_HH - 4096}""", 64)
    e = 184
    c0 = -2 * 0.7978845608028654 * LOG2E
    FS = 32 * cfg.f_stat
    S.op(lambda: A.wait_vm(S.need(("s", 1))), 4, FS)
    S.ops(f"""v_add_f32 v200, v200, v202
    v_add_f32 v201, v201, v203
    v_add_f32 v204, v204, v206
    v_add_f32 v205, v205, v207
    v_add_f32 v200, v200, v204
    v_add_f32 v201, v201, v205
    v_mov_b32 v202, v200
    v_mov_b32 v203, v201
    v_mov_b32 v{e+3}, 0
    v_permlane32_swap_b32 v200, v202
    v_permlane32_swap_b32 v201, v203
    v_add_f32 v200, v200, v202
    v_add_f32 v201, v201, v203
    v_mul_f32 v200, {fbits(-1/640)}, v200
    v_mul_f32 v201, {fbits(1/640)}, v201
    v_fma_f32 v201, -v200, v200, v201
    v_max_f32 v201, 0, v201
    v_add_f32 v{SG}, {fbits(1e-5)}, v201
    v_rsq_f32 v202, v{SG}
    s_nop 0
    v_mul_f32 v201, v{SG}, v202
    v_cvt_pk_bf16_f32 v{e+1}, v200, v201
    v_lshlrev_b32 v204, 16, v{e+1}
    v_and_b32 v205, 0xffff0000, v{e+1}
    v_sub_f32 v204, v200, v204
    v_sub_f32 v205, v201, v205
    v_cvt_pk_bf16_f32 v{e}, v200, v204
    v_cvt_pk_bf16_f32 v{e+2}, v205, v201
    v_mul_f32 v{K0}, {fbits(c0)}, v202
    v_mul_f32 v203, v202, v202
    v_mul_f32 v{K1}, {fbits(0.044715)}, v203
    v_mul_f32 v{K1}, v{K1}, v{K0}""", FS)
    def epi(p, E0):
        for a_ in range(2):
            g, u, t = ACC + 32*p + 8*a_, ACC + 32*p + 16 + 8*a_, 200 + 8*a_
            for h_ in range(2):
                R = range(4*h_, 4*h_ + 4)
                for d in R: S.ops(f"v_mul_f32 v{t+d}, v{g+d}, v{g+d}", E0)
                for d in R: S.ops(f"v_fma_f32 v{t+d}, v{t+d}, v{K1}, v{K0}", E0)
                for d in R: S.ops(f"v_mul_f32 v{t+d}, v{t+d}, v{g+d}", E0)
                for d in R: S.ops(f"v_exp_f32 v{t+d}, v{t+d}\nv_mul_f32 v{u+d}, v{u+d}, v{g+d}", E0)
                for d in R: S.ops(f"v_fma_f32 v{t+d}, v{t+d}, v{SG}, v{SG}", E0)
                for d in R: S.ops(f"v_rcp_f32 v{t+d}, v{t+d}", E0)
                for d in R: S.ops(f"v_mul_f32 v{u+d}, v{u+d}, v{t+d}", E0)
            for d in range(4): S.ops(f"v_cvt_pk_bf16_f32 v{g+d}, v{u+2*d}, v{u+2*d+1}", E0)
            S.ops(f"buffer_store_dwordx4 {vr(g,4)}, v8, {WS}, s53 offen offset:{512*a_} sc1", E0)
        S.op(lambda: (mk.__setitem__(p, A.vm), S.log.append(("epi done", p, S.t))), 0, E0)
        S.ops("s_add_u32 s53, s53, 16384", E0)
    FI = Fine(A, cfg, "p4"); FI()
    for f, (s, nt) in enumerate(order):
        if f % 24 == 1: FI()
        if f == 80:
            assert not S.q, "statistics not finished"
            for q in range(4): A(f"{MF32} {vr(ACC+16*q,16)}, {vr(160+4*q,4)}, {vr(e,4)}, {vr(ACC+16*q,16) if q < 2 else '0'}")
            epi(0, 83 * 32)
        if f == 160:
            for q in (4, 5): A(f"{MF32} {vr(ACC+16*q,16)}, {vr(160+4*q,4)}, {vr(e,4)}, 0")
            epi(1, 163 * 32)
        if f % 2 == 0:
            if f < 80: A.wait(vm=S.need(("t", s)), lg=rd[f + 1])
            else: A.wait_lg(rd[f + 1])
        d = vr(ACC+16*nt, 16)
        A(f"{MF32} {d}, {vr(WF+4*(f%4),4)}, {ar(4*s,4)}, {'0' if f < 2 else d}")
        if f + 4 < 240: wread(f + 4)
        S.gap(32 * f, cfg.p4_budget)
    FI(); S.flush_ops(); FI.done()
    stamp(A, cfg, 19)
    A("s_barrier")
    S.bar = T5 + 1
    vec_read(A, 108, 3)
    tt = [240 * 32]
    def some(k):
        S.take(k, tt[0]); tt[0] += 160
    B0 = " op_sel_hi:[1,0,0]"
    for a_ in range(2):
        g, u, t = ACC + 64 + 8*a_, ACC + 80 + 8*a_, 200
        for d in range(0, 8, 2): A(f"v_pk_mul_f32 {vr(t+d,2)}, {vr(g+d,2)}, {vr(g+d,2)}")
        for d in range(0, 8, 2): A(f"v_pk_fma_f32 {vr(t+d,2)}, {vr(t+d,2)}, {vr(K1,2)}, {vr(K0,2)}{B0}")
        for d in range(0, 8, 2): A(f"v_pk_mul_f32 {vr(t+d,2)}, {vr(t+d,2)}, {vr(g+d,2)}")
        some(2)
        for d in range(8): A(f"v_exp_f32 v{t+d}, v{t+d}")
        for d in range(0, 8, 2): A(f"v_pk_mul_f32 {vr(u+d,2)}, {vr(u+d,2)}, {vr(g+d,2)}")
        for d in range(0, 8, 2): A(f"v_pk_fma_f32 {vr(t+d,2)}, {vr(t+d,2)}, {vr(SG,2)}, {vr(SG,2)}{B0}")
        some(2)
        for d in range(8): A(f"v_rcp_f32 v{t+d}, v{t+d}")
        A("s_nop 0")
        for d in range(0, 8, 2): A(f"v_pk_mul_f32 {vr(u+d,2)}, {vr(u+d,2)}, {vr(t+d,2)}")
        for d in range(4): A(f"v_cvt_pk_bf16_f32 v{g+d}, v{u+2*d}, v{u+2*d+1}")
        A(f"buffer_store_dwordx4 {vr(g,4)}, v8, {WS}, s53 offen offset:{512*a_} sc1")
    mk[2] = A.vm
    stamp(A, cfg, 20)

def p5(A, cfg):
    S = RS
    S.every = cfg.p5_every; S.minlead = cfg.p5_lead
    A("s_waitcnt lgkmcnt(0)")
    for d in range(10): unpack(A, 160+2*d, 161+2*d, 108+d)
    A.wait_vm(S.need(("w", T5, 3)))
    A("s_barrier")
    stamp(A, cfg, 21)
    gemm16(A, S, T5, 48, T5, Fine(A, cfg, 'p5'), areg=p5reg, key="u", t0=TP5)
    assert not S.vq
    if cfg.verbose: print("p4/p5 log", S.log, "\nforced", S.forced)
    stamp(A, cfg, 22)
    A.nop(6)
    for d in range(0, 20, 2): A(f"v_pk_fma_f32 {vr(vX1+d,2)}, {vr(64+d,2)}, {vr(160+d,2)}, {vr(vX1+d,2)}")
    for d in range(10): A(f"v_cvt_pk_bf16_f32 v{100+d}, v{vX1+2*d}, v{vX1+2*d+1}")
    A(f"""buffer_store_dwordx4 v[100:103], v{TA}, {OUTS}, s82 offen
    buffer_store_dwordx4 v[104:107], v{TA}, {OUTS}, s82 offen offset:64
    buffer_store_dwordx2 v[108:109], v{TA+1}, {OUTS}, s82 offen offset:128""")

SEQ = [("p1", p1), ("p2", p2), ("p3", p3), ("p4", p4), ("p5", p5)]
```

```python
import sys, os, math, struct
sys.path.insert(0, os.path.dirname(os.path.abspath(__file__)))
from asmlib import *
from layout import *

NAME = "adaLN_cond__softmax_full_mha__glu_gated_geglu__prompt"
def fbits(x): return "0x%08x" % struct.unpack("<I", struct.pack("<f", x))[0]
LOG2E = 1.4426950408889634
QSCALE = (20 ** -0.5) * LOG2E
OOB = "0x80000000"

sW, sWV, sRB, sJ, sTAG, sT = "s2", "s3", "s4", "s5", "s6", "s7"
WS, XS, OUTS, WMOD, WQKV, CS, GEN = "s[8:11]", "s[12:15]", "s[16:19]", "s[20:23]", "s[24:27]", "s[28:31]", "s[32:35]"
sROLE, sU, sLG, sWB = "s36", "s37", "s38", "s39"
sTT, sCB = "s40", "s41"
vL16, vL16b, vL16c, vTAG, vL, vST, vF0 = "v1", "v2", "v3", "v4", "v5", "v6", "v7"
vL4 = "v252"
RING = 36 * 4096
L_MOD2 = RING
L_EXT = RING + 5120
L_MOD1 = L_EXT
L_RED = RING + 11264
L_STAT = RING + 11776
L_FLAG = RING + 12032
LDS_BYTES = 163840

class Cfg:
    stop = None
    stamps = False
    dump_q = False
    force_fallback = False
    hint_early = 1; p1_pre = 5; p1_up = 10; h_mid = 8; h_gap = 4; p1_every = 68; p1_budget = 16
    a_proc = 21; a_chk = 46; a_ring = 7; o_mid = 8; p3_up = 10; p3_every = 64
    x_turns = 5; x_mid = 8; x_gap = 4; p4_up = 14; p4_every = 70; p4_budget = 20
    f_stat = 56; hh_rt = 700; p5_every = 60; verbose = 0; warm = 1; p4_lead = 960; p5_lead = 900; minst = 0
    t_flag0 = 5300; t_chk0 = 6400; t_flag1 = 7600; t_chk1 = 8700; t_flag2 = 9100; t_chk2 = 10000
    fine = None; sleep = 0
    probe = None

def lds_addr(off):
    return [vL16, vL16b, vL16c][off >> 16], off & 0xffff

def vr(base, n): return f"v[{base}:{base+n-1}]" if n > 1 else f"v{base}"
def ar(base, n): return f"a[{base}:{base+n-1}]" if n > 1 else f"a{base}"

def stamp(A, cfg, n):
    if cfg.probe == n:
        A.lines += ["    s_memrealtime s[94:95]", "    s_waitcnt lgkmcnt(0)"]
    if not cfg.stamps or (cfg.minst and n not in (0, 11, 12, 31)): return
    A.lines += f"""    s_memrealtime s[98:99]
    s_memtime s[96:97]
    s_waitcnt lgkmcnt(0)
    v_writelane_b32 {vST}, s98, {n}
    v_writelane_b32 {vST}, s96, {32+n}""".split("\n")

class Fine:
    R = [20, 22, 24, 26, 28, 30, 64, 66, 70, 78, 80, 100]
    def __init__(self, A, cfg, name): self.A = A; self.on = cfg.stamps and cfg.fine == name; self.k = 0
    def __call__(self):
        if self.on and self.k < 12:
            r = self.R[self.k]
            self.A.lines.append(f"    s_memtime s[{r}:{r+1}]"); self.k += 1
    def done(self):
        if not self.on: return
        self.A.lines.append("    s_waitcnt lgkmcnt(0)")
        for k in range(self.k): self.A.lines.append(f"    v_writelane_b32 {vST}, s{self.R[k]}, {(23+k) if k < 8 else (55+k-8)}")

def unpack(A, lo, hi, src):
    A(f"v_lshlrev_b32 v{lo}, 16, v{src}")
    A(f"v_and_b32 v{hi}, 0xffff0000, v{src}")

def poll(A, loads, tmpv, nm="poll"):
    L = A.label(nm); E = A.label(nm + "e")
    A("s_mov_b32 s62, 0x20000")
    A(f"{L}:")
    for k, (vo, so, imm) in enumerate(loads):
        A(f"buffer_load_dword v{tmpv+k}, {vo}, {WS}, {so} offen offset:{imm} sc1")
    A("s_sub_u32 s62, s62, 1")
    A(f"s_cbranch_scc1 {E}")
    A("s_waitcnt vmcnt(0)")
    A(f"v_cmp_ne_u32 vcc, {sTAG}, v{tmpv}")
    for k in range(1, len(loads)):
        A(f"v_cmp_ne_u32 s[60:61], {sTAG}, v{tmpv+k}")
        A("s_or_b64 vcc, vcc, s[60:61]")
    A(f"s_cbranch_vccnz {L}")
    A(f"{E}:")
    A("s_waitcnt vmcnt(0)")

def exec_lanes(A, n):
    A(f"s_mov_b64 exec, {(1 << n) - 1}" if n < 32 else "s_mov_b32 exec_hi, 0")
def apoll_issue(A, soff, tmpv):
    A(f"v_mov_b32 v{tmpv}, 0\nbuffer_atomic_or v{tmpv}, {vL4}, {WS}, {soff} offen sc0 sc1")
def apoll(A, soff, n, tmpv, nm="ap"):
    L = A.label(nm); E = A.label(nm + "e")
    exec_lanes(A, n)
    A(f"s_mov_b32 s62, 0x20000\n{L}:")
    apoll_issue(A, soff, tmpv)
    A(f"""s_sub_u32 s62, s62, 1
    s_cbranch_scc1 {E}
    s_waitcnt vmcnt(0)
    v_cmp_ne_u32 vcc, {sTAG}, v{tmpv}
    s_cbranch_vccnz {L}
    {E}:
    s_waitcnt vmcnt(0)
    s_mov_b64 exec, -1""")

def apoll_async(A, soff, n, tmpv):
    exec_lanes(A, n); apoll_issue(A, soff, tmpv); A("s_mov_b64 exec, -1")
    return A.vm
def apoll_test(A, n, tmpv):
    exec_lanes(A, n)
    A(f"v_cmp_ne_u32 vcc, {sTAG}, v{tmpv}\ns_mov_b64 exec, -1")
def apoll_check(A, mark, soff, n, tmpv, nm="ap"):
    A.wait_vm(mark); apoll_test(A, n, tmpv)
    with A.cold("s_cbranch_vccnz"): apoll(A, soff, n, tmpv, nm)

def warm(A):
    k = A.nwarm = getattr(A, "nwarm", -1) + 1
    A("s_mov_b64 exec, 0")
    for w in range(4): A(f"s_cmp_eq_u32 {sWV}, {w}\ns_cbranch_scc1 L_wm{k}_{w}")
    A(f"L_wr{k}:\ns_mov_b64 exec, -1")

def set_flag(A, soff, imm=0, mark=None, voff=None):
    if mark != -1: A.wait_vm(A.vm if mark is None else mark)
    A(f"buffer_atomic_swap {vTAG}, {voff or vF0}, {WS}, {soff} offen offset:{imm} sc1")

def prologue(A, cfg):
    A(f"""s_cmp_ge_u32 {sW}, 256
    s_cbranch_scc1 L_end
    s_load_dwordx16 s[64:79], s[0:1], 0
    s_load_dwordx8 s[80:87], s[0:1], 64
    v_lshrrev_b32 v8, 6, v0
    v_and_b32 {vL}, 63, v0
    v_readfirstlane_b32 {sWV}, v8
    v_lshlrev_b32 {vL16}, 4, {vL}
    v_cmp_eq_u32 vcc, 0, {vL}
    v_mov_b32 {vF0}, {OOB}
    s_and_b32 s50, {sW}, 7
    s_lshr_b32 s51, {sW}, 3
    v_cndmask_b32 {vF0}, {vF0}, {vL}, vcc
    s_lshr_b32 {sRB}, s50, 1
    s_lshl_b32 {sRB}, {sRB}, 2
    s_and_b32 s52, s51, 3
    s_add_u32 {sRB}, {sRB}, s52
    s_and_b32 {sJ}, s50, 1
    s_lshl_b32 {sJ}, {sJ}, 3
    s_lshr_b32 s52, s51, 2
    s_add_u32 {sJ}, {sJ}, s52
    s_sub_u32 s52, s51, 10
    s_lshr_b32 s53, s52, 2
    s_lshl_b32 s53, s53, 3
    s_add_u32 s53, s53, s50
    s_lshl_b32 {sLG}, s53, 7
    s_and_b32 s52, s52, 3
    s_lshl_b32 s52, s52, 5
    s_add_u32 {sLG}, {sLG}, s52
    s_cmp_lt_u32 s53, 20
    s_cselect_b32 {sROLE}, 0, 3
    s_sub_u32 {sU}, {sW}, 192
    s_cmp_lt_u32 {sU}, 60
    s_cselect_b32 {sROLE}, 2, {sROLE}
    s_mul_i32 s52, s50, 640
    s_lshl_b32 s53, s51, 6
    s_add_u32 s52, s52, s53
    s_add_u32 s52, s52, 2560
    s_cmp_lt_u32 s51, 10
    s_cselect_b32 {sROLE}, 1, {sROLE}
    s_cselect_b32 {sLG}, s52, {sLG}
    s_mov_b32 s10, {WS_SIZE}
    s_mov_b32 s11, 0x20000
    s_mov_b32 s14, 2621440
    s_mov_b32 s15, 0x20000
    s_mov_b32 s22, 4915200
    s_mov_b32 s23, 0x20000
    s_mov_b32 s26, 2457600
    s_mov_b32 s27, 0x20000
    s_mov_b32 s30, 1280
    s_mov_b32 s31, 0x20000
    v_mov_b32 {vST}, 0
    s_waitcnt lgkmcnt(0)
    s_mov_b64 s[8:9], s[86:87]
    s_mov_b64 s[12:13], s[64:65]
    s_mov_b64 s[20:21], s[80:81]
    s_mov_b64 s[24:25], s[66:67]
    s_mov_b64 s[28:29], s[78:79]""")
    A(f"buffer_load_dword {vTAG}, {vST}, {WS}, 0 offen offset:{OFF_EPOCH} sc1")
    stamp(A, cfg, 0)

def late_ids(A):
    A(f"""v_add_u32 {vL16b}, 0x10000, {vL16}
    v_add_u32 {vL16c}, 0x20000, {vL16}
    s_lshl_b32 {sT}, {sRB}, 2
    s_add_u32 {sT}, {sT}, {sWV}
    s_lshl_b32 {sWB}, {sWV}, 12
    s_lshr_b32 {sCB}, {sJ}, 1
    s_and_b32 s52, {sJ}, 1
    s_lshl_b32 s52, s52, 2
    s_lshl_b32 {sTT}, {sRB}, 3
    s_add_u32 {sTT}, {sTT}, s52
    s_add_u32 {sTT}, {sTT}, {sWV}
    s_mov_b64 s[16:17], s[82:83]
    s_mov_b32 s18, 2621440
    s_mov_b32 s19, 0x20000
    s_mov_b32 s35, 0x20000""")

def x_issue(A):
    A(f"""v_and_b32 v8, 7, v0
    v_lshrrev_b32 v9, 3, {vL}
    s_mul_i32 s49, {sWV}, 20
    v_add_u32 v9, s49, v9
    v_mul_u32_u24 v10, 1280, v8
    v_lshl_add_u32 v10, v9, 4, v10
    v_cmp_gt_u32 vcc, 32, {vL}
    v_mov_b32 v11, {OOB}
    s_lshl_b32 s49, {sRB}, 4
    s_add_u32 s49, s49, {sJ}
    v_cndmask_b32 v11, v11, v10, vcc
    s_mul_i32 s49, s49, {8*1280}
    buffer_load_dwordx4 v[16:19], v10, {XS}, s49 offen
    buffer_load_dwordx4 v[20:23], v10, {XS}, s49 offen offset:128
    buffer_load_dwordx4 v[24:27], v11, {XS}, s49 offen offset:256""")

def tag_ready(A, mark):
    A.wait_vm(mark)
    A(f"""v_add_u32 {vTAG}, {TAG_INC}, {vTAG}
    s_nop 0
    v_readfirstlane_b32 {sTAG}, {vTAG}""")

GC, GW, GS = 128, 144, 184
def gemv_issue(A, NC):
    if NC == 2:
        A(f"""v_lshrrev_b32 v12, 1, v0
        v_and_b32 v13, 1, v0
        v_lshlrev_b32 v14, 3, v12
        v_lshlrev_b32 v15, 1, v12
        buffer_load_dwordx2 {vr(GC,2)}, v14, {CS}, 0 offen
        buffer_load_ushort v{GC+2}, v15, {CS}, 0 offen offset:1024
        v_mul_u32_u24 v12, 7680, v12
        v_lshlrev_b32 v13, 4, v13
        v_lshl_add_u32 v14, v12, 2, v13
        v_add_u32 v15, v12, v13""")
        mc = A.vm
        for i in range(5):
            A(f"s_add_u32 s50, {sLG}, {7680*i if i < 4 else 512*7680}")
            A(f"buffer_load_dwordx4 {vr(GW+4*i,4)}, v{14 if i < 4 else 15}, {WMOD}, s50 offen")
    else:
        A(f"""v_lshrrev_b32 v12, 2, v0
        v_and_b32 v13, 3, v0
        v_mul_u32_u24 v14, 20, v12
        buffer_load_dwordx4 {vr(GC,4)}, v14, {CS}, 0 offen
        buffer_load_dword v{GC+4}, v14, {CS}, 0 offen offset:16
        v_mul_u32_u24 v12, {76800}, v12
        v_lshl_add_u32 v14, v13, 4, v12""")
        mc = A.vm
        for i in range(10):
            A(f"s_add_u32 s50, {sLG}, {7680*i}")
            A(f"buffer_load_dwordx4 {vr(GW+4*i,4)}, v14, {WMOD}, s50 offen")
    return mc
def gemv_silu(A, NL):
    T = GS + 10
    for i in range(NL):
        if i % 2 == 0: A(f"v_lshlrev_b32 v{GS+i}, 16, v{GC+i//2}")
        else: A(f"v_and_b32 v{GS+i}, 0xffff0000, v{GC+i//2}")
    for i in range(NL): A(f"v_mul_f32 v{T+i}, {fbits(-LOG2E)}, v{GS+i}")
    for i in range(NL): A(f"v_exp_f32 v{T+i}, v{T+i}")
    for i in range(NL): A(f"v_add_f32 v{T+i}, 1.0, v{T+i}")
    for i in range(NL): A(f"v_rcp_f32 v{T+i}, v{T+i}")
    for i in range(NL): A(f"v_mul_f32 v{GS+i}, v{GS+i}, v{T+i}")
    for i in range(NL): A(f"v_cvt_pk_bf16_f32 v{GS+i}, v{GS+i}, v{GS+i}")
    for i in range(NL): A(f"v_lshlrev_b32 v{GS+i}, 16, v{GS+i}")
def gemv_partial(A, NC, marks=None, hook=None, hookpos=0):
    NL = 5 if NC == 2 else 10
    t = GS + 10
    for r in range(NL):
        if marks: A.wait_vm(marks[r])
        if hook and hookpos == 2 and r == NL - 1: hook()
        for d in range(4): unpack(A, t+8+2*d, t+9+2*d, GW+4*r+d)
        so = (GS + r) & ~1; hi = (GS + r) & 1
        for d in range(4):
            if r == 0: A(f"v_pk_mul_f32 {vr(t+2*d,2)}, {vr(t+8+2*d,2)}, {vr(so,2)} op_sel:[0,{hi}] op_sel_hi:[1,{hi}]")
            else: A(f"v_pk_fma_f32 {vr(t+2*d,2)}, {vr(t+8+2*d,2)}, {vr(so,2)}, {vr(t+2*d,2)} op_sel:[0,{hi},0] op_sel_hi:[1,{hi},1]")
    A(f"""v_lshrrev_b32 v{t+8}, 4, {vL}
    v_and_b32 v{t+9}, {NC-1}, {vL}""")
    for i in range(4): A(f"v_permlane32_swap_b32 v{t+i}, v{t+4+i}")
    for i in range(4): A(f"v_add_f32 v{t+i}, v{t+i}, v{t+4+i}")
    A(f"""v_lshl_add_u32 v{t+8}, v{t+9}, 2, v{t+8}
    s_lshl_b32 s50, {sWV}, 7""")
    for i in range(2): A(f"v_permlane16_swap_b32 v{t+i}, v{t+2+i}")
    for i in range(2): A(f"v_add_f32 v{t+i}, v{t+i}, v{t+2+i}")
    A(f"s_add_u32 s50, s50, {L_RED}")
    for ror in ((8, 4, 2) if NC == 2 else (8, 4)):
        A("s_nop 0" if ror == 8 else "s_nop 1")
        for i in range(2): A(f"v_add_f32_dpp v{t+i}, v{t+i}, v{t+i} row_ror:{ror} row_mask:0xf bank_mask:0xf")
    A(f"""v_lshl_add_u32 v{t+8}, v{t+8}, 3, s50
    ds_write_b64 v{t+8}, {vr(t,2)}
    s_waitcnt lgkmcnt(0)
    s_barrier""")
    if hook and hookpos == 1: hook()
def gemv_publish(A, NC):
    t = GS + 10
    A(f"""v_and_b32 v{t+8}, 15, {vL}
    v_lshlrev_b32 v{t+8}, 3, v{t+8}
    v_add_u32 v{t+9}, {L_RED}, v{t+8}
    ds_read_b64 {vr(t,2)}, v{t+9}
    ds_read_b64 {vr(t+2,2)}, v{t+9} offset:128
    ds_read_b64 {vr(t+4,2)}, v{t+9} offset:256
    ds_read_b64 {vr(t+6,2)}, v{t+9} offset:384
    s_mul_hi_u32 s51, {sLG}, {(1<<32)//1280+1}
    s_cmp_eq_u32 s51, 1
    s_cselect_b32 s52, 1.0, 0
    s_cmp_eq_u32 s51, 4
    s_cselect_b32 s52, 1.0, s52
    s_lshl_b32 s50, {sLG}, 1
    s_add_u32 s50, s50, {OFF_MODG}
    v_cmp_gt_u32 vcc, {4*NC}, v0
    v_mov_b32 v{t+9}, {OOB}
    s_waitcnt lgkmcnt(0)
    v_cndmask_b32 v{t+9}, v{t+9}, v{t+8}, vcc
    v_pk_add_f32 {vr(t,2)}, {vr(t,2)}, {vr(t+2,2)}
    v_pk_add_f32 {vr(t+4,2)}, {vr(t+4,2)}, {vr(t+6,2)}
    v_pk_add_f32 {vr(t,2)}, {vr(t,2)}, {vr(t+4,2)}
    v_cvt_pk_bf16_f32 v{t+2}, v{t}, v{t+1}""")
    unpack(A, t, t+1, t+2)
    A(f"""v_add_f32 v{t}, s52, v{t}
    v_add_f32 v{t+1}, s52, v{t+1}
    v_cvt_pk_bf16_f32 v{t}, v{t}, v{t+1}
    v_mov_b32 v{t+1}, {vTAG}
    buffer_store_dwordx2 {vr(t,2)}, v{t+9}, {WS}, s50 offen sc1""")

def newpath(A): A.trace.append("s_waitcnt vmcnt(0) lgkmcnt(0)")

def stage_a(A, cfg):
    LJ = A.label("joinA")
    A(f"s_cmp_lg_u32 {sROLE}, 0")
    with A.cold("s_cbranch_scc1", LJ): stage_a_other(A, cfg, LJ)
    mc = gemv_issue(A, 2)
    marks = [A.vm - 4 + r for r in range(5)]
    x_issue(A)
    tag_ready(A, mc)
    gemv_silu(A, 5)
    A(f"""s_lshr_b32 s54, {sLG}, 5
    s_mul_hi_u32 s55, s54, {(1<<32)//10+1}
    s_mul_i32 s55, s55, 54
    s_cmp_ge_u32 s54, 40
    s_cselect_b32 s56, 246, 0
    s_add_u32 s54, s54, s55
    s_sub_u32 s54, s54, s56
    s_lshl_b32 s54, s54, 2
    s_add_u32 s54, s54, {OFF_FM}
    v_cmp_gt_u32 vcc, 16, v0
    v_lshlrev_b32 v12, 10, {vL}
    v_mov_b32 v13, {OOB}
    v_cndmask_b32 v12, v13, v12, vcc""")
    hint = lambda: set_flag(A, "s54", mark=-1, voff="v12")
    gemv_partial(A, 2, marks, hint if cfg.hint_early else None, cfg.hint_early)
    gemv_publish(A, 2)
    if not cfg.hint_early: hint()
    A("s_waitcnt vmcnt(2)")
    A(f"{LJ}:")
    stamp(A, cfg, 1)

def stage_a_other(A, cfg, LJ):
    LR = A.label("roleR"); LI = A.label("roleI")
    A(f"s_cmp_eq_u32 {sROLE}, 2\ns_cbranch_scc1 {LR}")
    x_issue(A)
    mx = A.vm
    A(f"s_cmp_eq_u32 {sROLE}, 3\ns_cbranch_scc1 {LI}")
    gemv_issue(A, 4)
    tag_ready(A, mx)
    A(f"s_branch {LJ}")
    A(f"{LI}:"); newpath(A)
    A(f"""s_getpc_b64 s[52:53]
    L_pc:
    s_sub_u32 s52, s52, L_pc-L_top
    s_subb_u32 s53, s53, 0
    s_and_b32 s50, {sW}, 8
    s_lshr_b32 s50, s50, 1
    s_add_u32 s50, s50, {sWV}
    s_lshl_b32 s50, s50, 13
    v_lshl_add_u32 v12, {vL}, 7, s50
    v_add_u32 v14, 0x10000, v12
    v_min_u32 v12, L_bot-L_top, v12
    v_min_u32 v14, L_bot-L_top, v14
    global_load_dword v13, v12, s[52:53]
    global_load_dword v15, v14, s[52:53]""")
    tag_ready(A, A.vm - 2)
    A(f"s_branch {LJ}")
    A(f"{LR}:"); newpath(A)
    A(f"""s_lshr_b32 s52, {sU}, 1
    s_lshl_b32 s52, s52, 2
    s_add_u32 s52, s52, {sWV}
    s_mul_hi_u32 s50, s52, {(1<<32)//3+1}
    s_mul_i32 s51, s50, 3
    s_sub_u32 s51, s52, s51
    s_lshl_b32 s51, s51, 1
    s_and_b32 s52, {sU}, 1
    s_add_u32 s51, s51, s52
    s_mul_i32 s52, s50, {16*3840}
    s_mul_i32 s53, s51, 640
    s_add_u32 s52, s52, s53
    s_mul_i32 s53, {sWV}, 10240""")
    for m in range(10):
        if m < 5:
            A(f"""v_add_u32 v{30+m}, {64*m}, {vL}
            v_mul_u32_u24 v29, 1639, v{30+m}
            v_lshrrev_b32 v29, 16, v29
            v_mul_u32_u24 v29, 3200, v29
            v_lshl_add_u32 v{30+m}, v{30+m}, 4, v29""")
        A(f"s_add_u32 m0, s53, {1024*m}")
        if m == 5: A(f"s_add_u32 s52, s52, {8*3840}")
        else: A("s_nop 0")
        A(f"buffer_load_dwordx4 v{30+m%5}, {WQKV}, s52 offen lds")
    m_dma = A.vm
    x_issue(A)
    A(f"""s_lshr_b32 s54, s51, 1
    s_and_b32 s55, s51, 1
    s_mul_i32 s59, s50, 3072
    s_lshl_b32 s63, s50, 10
    s_add_u32 s56, s63, {120*1024}
    s_add_u32 s58, s56, {-128 & 0xffffffff}
    s_add_u32 s57, s59, 2048
    s_add_u32 s63, s59, 768
    s_add_u32 s62, s59, {-128 & 0xffffffff}
    s_cmp_eq_u32 s54, 1
    s_cselect_b32 s56, s59, s56
    s_cselect_b32 s57, s63, s57
    s_cselect_b32 s58, s62, s58
    s_add_u32 s63, s59, 1152
    s_add_u32 s62, s59, 1664
    s_cmp_eq_u32 s54, 2
    s_cselect_b32 s56, s63, s56
    s_cselect_b32 s57, s63, s57
    s_cselect_b32 s58, s62, s58
    v_mov_b32 v40, s56
    v_mov_b32 v41, s57
    v_mov_b32 v42, s58
    v_and_b32 v43, 31, {vL}
    v_lshrrev_b32 v44, 5, {vL}
    v_lshlrev_b32 v44, 9, v44
    s_mov_b32 s59, 163840""")
    for m in range(5):
        A(f"""v_add_u32 v45, {32*m}, v43
        v_mul_u32_u24 v46, 1639, v45
        v_lshrrev_b32 v46, 16, v46
        v_mul_u32_u24 v47, 40, v46
        v_sub_u32 v45, v45, v47
        v_cmp_gt_u32 vcc, 24, v45
        v_mad_u32_u24 v46, v46, s59, v44
        v_lshl_add_u32 v46, v45, 4, v46
        v_cndmask_b32 v47, v42, v41, vcc
        v_cmp_gt_u32 vcc, 16, v45
        s_nop 1
        v_cndmask_b32 v47, v47, v40, vcc
        v_add_u32 v{35+m}, v46, v47""")
    A(f"""v_lshrrev_b32 v45, 5, {vL}
    v_lshlrev_b32 v45, 3, v45
    v_bfe_u32 v46, {vL}, 2, 2
    v_add_u32 v45, v45, v46
    v_mul_u32_u24 v45, 640, v45
    v_bfe_u32 v46, {vL}, 4, 1
    v_lshl_add_u32 v45, v46, 5, v45
    v_and_b32 v46, 3, {vL}
    v_lshl_add_u32 v45, v46, 3, v45
    v_add_u32 v45, s53, v45
    s_mul_i32 s52, s55, {8*163840}
    s_add_u32 s52, s52, {OFF_WQF}
    s_add_u32 s53, s52, {4*163840}""")
    tag_ready(A, m_dma)
    mk = []
    for m in range(10):
        A(f"ds_read_b64_tr_b16 {vr(64+4*m,2)}, v45 offset:{64*m}")
        A(f"ds_read_b64_tr_b16 {vr(66+4*m,2)}, v45 offset:{64*m+2560}")
        mk.append(A.lg)
        if m >= 3:
            A.wait_lg(mk[m-3])
            A(f"buffer_store_dwordx4 {vr(64+4*(m-3),4)}, v{35+(m-3)%5}, {WS}, s{52+(m-3)//5} offen sc1")
    for m in range(7, 10):
        A.wait_lg(mk[m])
        A(f"buffer_store_dwordx4 {vr(64+4*m,4)}, v{35+m%5}, {WS}, s{52+m//5} offen sc1")
    A(f"""s_lshr_b32 s50, {sU}, 1
    s_lshl_b32 s55, s55, 6
    s_add_u32 s50, s50, s55
    s_lshl_b32 s50, s50, 2
    s_add_u32 s50, s50, {OFF_FWQ}
    v_cmp_gt_u32 vcc, 16, v0
    v_lshlrev_b32 v12, 9, {vL}
    v_mov_b32 v13, {OOB}
    v_cndmask_b32 v12, v13, v12, vcc
    s_waitcnt vmcnt(0)
    s_barrier""")
    set_flag(A, "s50", voff="v12", mark=-1)

def gather_setup(A, ngran, ldsdst, t):
    nld = (ngran // 2 + 255) // 256
    last = ngran // 2 - 256 * (nld - 1)
    A(f"""v_lshlrev_b32 v{t+12}, 4, v0
    v_and_b32 v{t+13}, {last-1}, v0
    v_lshlrev_b32 v{t+14}, 3, v0
    v_lshlrev_b32 v{t+15}, 3, v{t+13}
    v_lshlrev_b32 v{t+13}, 4, v{t+13}
    v_add_u32 v{t+14}, {ldsdst}, v{t+14}
    v_add_u32 v{t+15}, {ldsdst}, v{t+15}""")
    return nld
def gather_load(A, g0, nld, k, t, step=1):
    A(f"s_mov_b32 s63, {OFF_MODG + g0*8 + 4096*k*step}")
    A(f"buffer_load_dwordx4 {vr(t+4*k,4)}, v{t+12 if k < nld-1 else t+13}, {WS}, s63 offen sc1")
def gather_check(A, nld, t):
    first = True
    for k in range(nld):
        for d in (1, 3):
            if first: A(f"v_cmp_ne_u32 vcc, {sTAG}, v{t+4*k+d}"); first = False
            else: A(f"v_cmp_ne_u32 s[60:61], {sTAG}, v{t+4*k+d}\ns_or_b64 vcc, vcc, s[60:61]")
def gather_spin(A, g0, nld, t, extra=None, step=1):
    L = A.label("mg"); E = A.label("mge")
    A(f"s_mov_b32 s62, 0x20000\n{L}:")
    for k in range(nld): gather_load(A, g0, nld, k, t, step)
    if extra: extra()
    A(f"s_sub_u32 s62, s62, 1\ns_cbranch_scc1 {E}\ns_waitcnt vmcnt(0)")
    gather_check(A, nld, t)
    A(f"s_cbranch_vccnz {L}\n{E}:\ns_waitcnt vmcnt(0)")
def gather_write(A, nld, t, step=1):
    for k in range(nld):
        A(f"v_mov_b32 v{t+4*k+1}, v{t+4*k+2}")
        A(f"ds_write_b64 v{t+14 if k < nld-1 else t+15}, {vr(t+4*k,2)} offset:{2048*k*step}")

def stage_h(A, cfg):
    late_ids(A)
    A(f"""v_lshlrev_b32 v29, 5, v8
    v_add_u32 v29, {L_STAT}, v29
    s_lshl_b32 s50, {sWV}, 3
    v_add_u32 v28, s50, v29""")
    for d in range(12): unpack(A, 64+2*d, 65+2*d, 16+d)
    A("v_pk_add_f32 v[30:31], v[64:65], v[66:67]\nv_pk_mul_f32 v[32:33], v[64:65], v[64:65]")
    for d in range(2, 24, 2):
        if d > 2: A(f"v_pk_add_f32 v[30:31], v[30:31], {vr(64+d,2)}")
        A(f"v_pk_fma_f32 v[32:33], {vr(64+d,2)}, {vr(64+d,2)}, v[32:33]")
    A(f"""v_add_f32 v30, v30, v31
    v_add_f32 v31, v32, v33
    s_nop 0
    v_add_f32_dpp v30, v30, v30 row_ror:8 row_mask:0xf bank_mask:0xf
    v_add_f32_dpp v31, v31, v31 row_ror:8 row_mask:0xf bank_mask:0xf
    v_mov_b32 v32, v30
    v_mov_b32 v33, v31
    s_nop 0
    v_permlane16_swap_b32 v30, v32
    v_permlane16_swap_b32 v31, v33
    v_pk_add_f32 v[30:31], v[30:31], v[32:33]
    v_mov_b32 v32, v30
    v_mov_b32 v33, v31
    s_nop 0
    v_permlane32_swap_b32 v30, v32
    v_permlane32_swap_b32 v31, v33
    v_pk_add_f32 v[30:31], v[30:31], v[32:33]
    ds_write_b64 v28, v[30:31]""")
    nld = 2
    A(f"""s_mul_i32 s50, {sWV}, 40
    v_min_u32 v44, 39, {vL}
    v_add_u32 v44, s50, v44
    v_lshlrev_b32 v46, 3, v44
    v_lshlrev_b32 v44, 4, v44
    v_add_u32 v45, 2560, v44
    v_add_u32 v46, {L_MOD1}, v46
    v_add_u32 v47, 1280, v46
    v_lshlrev_b32 {vL4}, 2, {vL}
    s_lshl_b32 s47, {sT}, 8
    s_add_u32 s47, s47, {OFF_FM}
    s_lshr_b32 s48, {sJ}, 3
    s_lshl_b32 s50, {sRB}, 1
    s_add_u32 s48, s48, s50
    s_lshl_b32 s48, s48, 8
    s_add_u32 s48, s48, {OFF_FWQ}
    s_waitcnt lgkmcnt(0)
    s_barrier
    ds_read_b128 v[52:55], v29
    ds_read_b128 v[56:59], v29 offset:16
    v_lshlrev_b32 v28, 4, v9
    v_add_u32 v28, {L_MOD1}, v28
    v_lshlrev_b32 v10, 9, v9
    v_lshl_add_u32 v10, v8, 4, v10
    v_cmp_gt_u32 vcc, 32, {vL}
    v_mov_b32 v11, {OOB}
    s_lshr_b32 s44, {sJ}, 2
    s_lshl_b32 s45, {sRB}, 2
    v_cndmask_b32 v11, v11, v10, vcc
    s_add_u32 s54, s44, s45
    s_mul_i32 s44, s54, 40960
    s_and_b32 s55, {sJ}, 3
    s_lshl_b32 s45, s55, 7
    s_add_u32 s44, s44, s45
    s_add_u32 s44, s44, {OFF_H}
    s_add_u32 s45, s44, {8*512}
    s_add_u32 s46, s44, {16*512}
    s_lshl_b32 s49, s54, 8
    s_lshl_b32 s55, s55, 4
    s_add_u32 s49, s49, s55
    s_lshl_b32 s55, {sWV}, 2
    s_add_u32 s49, s49, s55
    s_add_u32 s49, s49, {OFF_FH}
    s_waitcnt lgkmcnt(0)
    v_pk_add_f32 v[52:53], v[52:53], v[54:55]
    v_pk_add_f32 v[56:57], v[56:57], v[58:59]
    v_pk_add_f32 v[52:53], v[52:53], v[56:57]
    v_mul_f32 v52, {fbits(-1/640)}, v52
    v_mul_f32 v53, {fbits(1/640)}, v53
    v_fma_f32 v53, -v52, v52, v53
    v_max_f32 v53, 0, v53
    v_add_f32 v53, {fbits(1e-5)}, v53
    v_rsq_f32 v54, v53""")
    for d in range(0, 24, 2): A(f"v_pk_add_f32 {vr(64+d,2)}, {vr(64+d,2)}, v[52:53] op_sel_hi:[1,0]")
    for d in range(0, 24, 2): A(f"v_pk_mul_f32 {vr(64+d,2)}, {vr(64+d,2)}, v[54:55] op_sel_hi:[1,0]")
    import phases
    phases.p1_setup(A, cfg)
    A(f"s_cmp_eq_u32 {sROLE}, 1")
    with A.cold("s_cbranch_scc1"):
        A("s_waitcnt vmcnt(10)")
        gemv_silu(A, 10)
        gemv_partial(A, 4, [A.vm - 9 + r for r in range(10)])
        gemv_publish(A, 4)
    stamp(A, cfg, 2)
    apoll(A, "s47", 20, 48, "pm")
    for k in range(nld): gather_load(A, 0, nld, k, 32, 0)
    mg = A.vm
    apoll_async(A, "s48", 30, 50)
    A.wait_vm(mg)
    gather_check(A, nld, 32)
    with A.cold("s_cbranch_vccnz"): gather_spin(A, 0, nld, 32, step=0)
    gather_write(A, nld, 32, step=0)
    A("s_waitcnt lgkmcnt(0)")
    stamp(A, cfg, 3)
    mk = []
    for g in range(3):
        A(f"ds_read_b128 {vr(88+8*g,4)}, v28 offset:{128*g}")
        A(f"ds_read_b128 {vr(92+8*g,4)}, v28 offset:{1280+128*g}")
        mk.append(A.lg)
    A.m_wq = A.vm
    for g in range(3):
        A.wait_lg(mk[g])
        for d in range(4):
            unpack(A, 56, 57, 88+8*g+d)
            unpack(A, 58, 59, 92+8*g+d)
            A(f"""v_pk_fma_f32 v[56:57], v[58:59], {vr(64+8*g+2*d,2)}, v[56:57]
            v_cvt_pk_bf16_f32 v{112+4*g+d}, v56, v57""")
        A(f"buffer_store_dwordx4 {vr(112+4*g,4)}, v{10 if g < 2 else 11}, {WS}, s{44+g} offen sc1")

def finish(A, cfg):
    L = A.label("noep")
    if cfg.stamps:
        stamp(A, cfg, 31)
        A(f"""s_lshl_b32 s50, {sW}, 2
        s_add_u32 s50, s50, {sWV}
        s_lshl_b32 s50, s50, 8
        s_add_u32 s50, s50, {OFF_DBG}
        v_lshlrev_b32 v8, 2, {vL}
        buffer_store_dword {vST}, v8, {WS}, s50 offen""")
    if cfg.stop is None:
        A(f"""s_or_b32 s50, {sW}, {sWV}
        s_cmp_eq_u32 s50, 0""")
        with A.cold("s_cbranch_scc1"): set_flag(A, "0", OFF_EPOCH, mark=-1)
    if cfg.probe is not None:
        if cfg.probe == 31: stamp(A, cfg, 31)
        LS = A.label("spin")
        A(f"""{LS}:
        s_sleep 8
        s_memrealtime s[92:93]
        s_waitcnt lgkmcnt(0)
        s_sub_u32 s92, s92, s94
        s_cmp_lt_u32 s92, 10000
        s_cbranch_scc1 {LS}""")
    A("L_end:\ns_endpgm")
    A.nhot = len(A.lines)
    A.lines += A.coldlines
    if hasattr(A, "tailcode"): A.tailcode()
    A("L_bot:\ns_endpgm")

HEAD = f"""; fused adaLN + softmax MHA + GEGLU block, one persistent launch (generated by my gen.py)
; @launch grid=(256,1,1) block=(256,1,1) lds={LDS_BYTES}
.amdgcn_target "amdgcn-amd-amdhsa--gfx950"
.text
.globl {NAME}_kernel
.p2align 12
.p2align 8
.type {NAME}_kernel,@function
{NAME}_kernel:
L_top:
"""
TAIL = f""".section .rodata,"a"
.p2align 6
.amdhsa_kernel {NAME}_kernel
  .amdhsa_next_free_vgpr 512
  .amdhsa_next_free_sgpr 102
  .amdhsa_accum_offset 256
  .amdhsa_group_segment_fixed_size 0
  .amdhsa_kernarg_size 96
  .amdhsa_user_sgpr_count 2
  .amdhsa_user_sgpr_kernarg_segment_ptr 1
  .amdhsa_system_sgpr_workgroup_id_x 1
  .amdhsa_float_denorm_mode_32 3
.end_amdhsa_kernel
"""

def place_stubs(A, cfg):
    import subprocess, tempfile, re
    sys.path.insert(0, "cdna_kernels")
    import cdna_launch as cl
    nw = getattr(A, "nwarm", -1) + 1
    alias = lambda tgt: [f".set L_wm{k}_{w}, {tgt.get((k, w), f'L_wr{k}')}" for k in range(nw) for w in range(4)]
    def sub(lines, tgt): return [re.sub(r"L_wm(\d+)_(\d+)", lambda m: tgt.get((int(m.group(1)), int(m.group(2))), f"L_wr{m.group(1)}"), l) if "L_wm" in l else l for l in lines]
    src = cl.with_harness_metadata(HEAD + "\n".join(sub(A.lines, {})) + "\n" + TAIL, NAME + "_kernel", 12, launch_lists=True)
    d = tempfile.mkdtemp()
    open(d + "/a.s", "w").write(src)
    r = subprocess.run(["clang", "-x", "assembler", "-target", "amdgcn-amd-amdhsa", "-mcpu=gfx950", "-c", d + "/a.s", "-o", d + "/a.o"], capture_output=True, text=True)
    assert r.returncode == 0, r.stderr[:2000]
    dis = subprocess.run(["llvm-objdump", "-d", "-z", "--mcpu=gfx950", d + "/a.o"], capture_output=True, text=True).stdout
    top = int(re.search(r"^([0-9a-f]+) <(?:L_top|" + NAME + "_kernel)>:", dis, re.M).group(1), 16)
    ins = [(int(m.group(1), 16), 4 * len(m.group(2).split())) for m in re.finditer(r"// ([0-9A-F]{12}): ([0-9A-F ]+)", dis)]
    sizes = [sz for (ad, sz) in ins if ad >= top]
    out = []; addr = top; k = -1; i = 0; nxt = (top // 4096 + 1) * 4096; stubs = {}
    for n, l in enumerate(A.lines):
        t = l.strip()
        if t.startswith("L_wr") and t.endswith(":"): k = int(t[4:-1])
        if t.endswith(":") or t.startswith((";", ".")): out.append(l); continue
        if addr >= nxt:
            nxt += 4096
            if k >= 0 and n < A.nhot and cfg.warm:
                q = stubs.setdefault(k, []); q.append(len(out)); out.append(None); addr += 4
        out.append(l); addr += sizes[i]; i += 1
    tgt = {}
    for k, q in stubs.items():
        for j, pos in enumerate(q):
            if j < 4: tgt[(k, j)] = f"L_pg{k}_{j}"
            out[pos] = f"L_pg{k}_{j}:\n    s_cbranch_execz " + (f"L_pg{k}_{j+4}" if j + 4 < len(q) else f"L_wr{k}")
    A.lines = sub(out, tgt)
    if cfg.verbose: print("code bytes", addr - top, "entry offset", top, "stubs", {k: len(q) for k, q in stubs.items()})

def build(cfg):
    import phases
    A = Asm()
    seq = [("pro", prologue), ("a", stage_a), ("h", stage_h)] + phases.SEQ
    for nm, f in seq:
        A.c(f"==================== {nm}")
        f(A, cfg)
        if cfg.stop == nm: break
    finish(A, cfg)
    if cfg.verbose: print("auto nops:", A.autonops)
    errs = check(A.trace, "kernel")
    for sd in getattr(A, "sides", []): errs += check(sd, "side")
    place_stubs(A, cfg)
    return HEAD + A.text() + TAIL, errs

if __name__ == "__main__":
    import argparse
    ap = argparse.ArgumentParser()
    ap.add_argument("-o", default=f"cdna_kernels/{NAME}.s")
    ap.add_argument("--stop"); ap.add_argument("--stamps", action="store_true")
    ap.add_argument("--dump_q", action="store_true"); ap.add_argument("--force_fallback", action="store_true")
    ap.add_argument("--probe", type=int)
    ap.add_argument("--fine")
    ap.add_argument("--set", action="append", default=[])
    a = ap.parse_args()
    for kv in a.set:
        k_, v_ = kv.split("="); assert hasattr(Cfg, k_), k_; setattr(Cfg, k_, int(v_))
    cfg = Cfg(); cfg.fine = a.fine; cfg.probe = a.probe; cfg.stop = a.stop; cfg.stamps = a.stamps; cfg.dump_q = a.dump_q; cfg.force_fallback = a.force_fallback
    sys.modules["gen"] = sys.modules["__main__"]
    s, errs = build(cfg)
    open(a.o, "w").write(s)
    print(f"wrote {a.o}: {len(s)} bytes, {len(errs)} checker findings")
```
